```python
import torch

def _softmax(x, axis=-1):
    return torch.softmax(x, dim=axis)
def _gelu(x):
    return torch.nn.functional.gelu(x, approximate="tanh")
def _silu(x):
    return torch.nn.functional.silu(x)
def _sigmoid(x):
    return torch.sigmoid(x)
def _layernorm(x, axis=-1, eps=1e-5):
    m = x.mean(dim=axis, keepdim=True)
    v = x.var(dim=axis, keepdim=True, unbiased=False)
    return (x - m) / torch.sqrt(v + eps)
def _scatter_add(tgt, idx, src, axis=0):
    return tgt.clone().index_add_(axis, idx, src)
def _segment_sum(src, seg, n):
    out = torch.zeros((n,) + src.shape[1:], dtype=src.dtype)
    return out.index_add_(0, seg, src)
def _pad(x, pw):
    flat = tuple(v for pair in reversed(pw) for v in pair)
    return torch.nn.functional.pad(x, flat)

kernel_name = 'standalone__linear_kernel_rfa__decode'

def setup_inputs():

    _w = (lambda a: (lambda t: t.to(torch.bfloat16) if t.is_floating_point() else t)(torch.as_tensor(a)))
    B, H, Sq, Sk, D, M = 2, 32, 1, 4096, 128, 8
    return {
        "q": _w((lambda *s: torch.randn(*s, dtype=torch.bfloat16) * 0.4)(B, H, Sq, D)),
        "k": _w((lambda *s: torch.randn(*s, dtype=torch.bfloat16) * 1.6)(B, H, Sk, D)),
        "v": _w((lambda *s: torch.randn(*s, dtype=torch.bfloat16) * 1.6)(B, H, Sk, D)),
        "omega": _w((lambda *s: torch.randn(*s, dtype=torch.bfloat16) * 1.6)(M, D)),
    }

def reference(q, k, v, omega):
    d = q.shape[-1]
    m = omega.shape[0]
    scale = float(d) ** -0.25
    qs = q * scale
    ks = k * scale
    q_proj = torch.einsum("bhsd,md->bhsm", qs, omega)
    k_proj = torch.einsum("bhsd,md->bhsm", ks, omega)
    q_sq = 0.5 * torch.einsum("bhsd,bhsd->bhs", qs, qs)[..., None]
    k_sq = 0.5 * torch.einsum("bhsd,bhsd->bhs", ks, ks)[..., None]
    inv_sqrt_m = float(m) ** -0.5
    phi_q = torch.exp(q_proj - q_sq) * inv_sqrt_m + 1e-6
    phi_k = torch.exp(k_proj - k_sq) * inv_sqrt_m + 1e-6
    kv = torch.einsum("bhsm,bhsd->bhmd", phi_k, v)
    z  = torch.einsum("bhsm->bhm", phi_k)
    num = torch.einsum("bhqm,bhmd->bhqd", phi_q, kv)
    den = torch.einsum("bhqm,bhm->bhq", phi_q, z)[..., None] + 1e-6
    return num / den
```

```python
import re

TRANS = ("v_exp_f32", "v_log_f32", "v_rcp_f32", "v_rsq_f32", "v_sqrt_f32", "v_sin_f32", "v_cos_f32", "v_rcp_iflag_f32")

def regs_of(tok):
    tok = tok.strip()
    tok = re.sub(r"^-", "", tok)
    m = re.match(r"^abs\((.*)\)$", tok)
    if m: tok = m.group(1)
    m = re.match(r"^\|(.*)\|$", tok)
    if m: tok = m.group(1)
    m = re.match(r"^([vsa])(\d+)$", tok)
    if m: return [(m.group(1), int(m.group(2)))]
    m = re.match(r"^([vsa])\[(\d+):(\d+)\]$", tok)
    if m: return [(m.group(1), i) for i in range(int(m.group(2)), int(m.group(3)) + 1)]
    if tok in ("vcc", "vcc_lo", "vcc_hi"): return [("vcc", 0)]
    if tok in ("exec", "exec_lo", "exec_hi"): return [("exec", 0)]
    if tok == "m0": return [("m0", 0)]
    return []

class Ins:
    __slots__ = ("text", "op", "w", "r", "cls", "passes", "srcC", "states", "ab")
    def __init__(self, text):
        self.text = text
        t = text.split(";")[0].strip()
        parts = t.split(None, 1)
        self.op = parts[0]
        ops = []
        if len(parts) > 1:
            cur = ""; depth = 0
            for ch in parts[1]:
                if ch in "[(": depth += 1
                if ch in "])": depth -= 1
                if ch == "," and depth == 0:
                    ops.append(cur.strip()); cur = ""
                else:
                    cur += ch
            ops.append(cur.strip())
        toks = []
        for o in ops:
            sp = o.split()
            toks.append(sp[0] if sp else "")
        op = self.op
        self.w = []; self.r = []; self.cls = "other"; self.passes = 0; self.srcC = []; self.ab = []
        self.states = 1
        R = lambda ts: [x for tk in ts for x in regs_of(tk)]
        if op == "s_nop":
            self.cls = "nop"; self.states = int(toks[0], 0) + 1
        elif op.startswith("v_mfma"):
            self.cls = "sgemm" if op.endswith("_f32") and ("x4_f32" in op or "x2_f32" in op or "x1_" in op) else "xdl"
            if op in ("v_mfma_f32_16x16x32_bf16", "v_mfma_f32_16x16x16_bf16"): self.passes = 4
            elif op in ("v_mfma_f32_32x32x16_bf16",): self.passes = 8
            elif op == "v_mfma_f32_16x16x4_f32": self.passes = 8
            elif op == "v_mfma_f32_32x32x2_f32": self.passes = 16
            else: raise ValueError("unknown mfma " + op)
            self.w = R(toks[:1]); self.ab = R(toks[1:3]); self.srcC = R(toks[3:4]); self.r = self.ab + self.srcC
        elif op.startswith("v_"):
            self.cls = "valu"
            if op.startswith("v_cmp"):
                self.w = R(toks[:1]); self.r = R(toks[1:])
            elif op.startswith("v_permlane") and "swap" in op:
                self.w = R(toks[:2]); self.r = R(toks[:2])
            elif op.startswith(("v_fmac", "v_dot2c", "v_pk_fmac")):
                self.w = R(toks[:1]); self.r = R(toks)
            elif op.startswith(("v_add_co", "v_sub_co", "v_addc_co", "v_subb_co", "v_div_scale")):
                self.w = R(toks[:2]); self.r = R(toks[2:])
            elif op.startswith("v_div_fmas"):
                self.w = R(toks[:1]); self.r = R(toks[1:]) + [("vcc", 0)]
            elif op.startswith("v_cndmask") and len(toks) == 3:
                self.w = R(toks[:1]); self.r = R(toks[1:]) + [("vcc", 0)]
            else:
                self.w = R(toks[:1]); self.r = R(toks[1:])
        elif op.startswith(("buffer_", "global_", "flat_")):
            self.cls = "vmem"
            is_lds = " lds" in t
            if "load" in op and not is_lds and "load_lds" not in op:
                self.w = R(toks[:1]); self.r = R(toks[1:])
            elif "atomic" in op and " sc0" in t:
                if op.startswith("buffer_"):
                    self.w = R(toks[:1]); self.r = R(toks)
                else:
                    self.w = R(toks[:1]); self.r = R(toks[1:])
            else:
                self.r = R(toks)
        elif op.startswith("ds_"):
            self.cls = "ds"
            if "read" in op or "permute" in op or "swizzle" in op or ("rtn" in op):
                self.w = R(toks[:1]); self.r = R(toks[1:])
            else:
                self.r = R(toks)
        elif op.startswith("s_"):
            self.cls = "salu"
            if op.startswith(("s_cmp", "s_waitcnt", "s_barrier", "s_branch", "s_cbranch", "s_endpgm", "s_setprio", "s_sleep")):
                self.r = R(toks)
            else:
                self.w = R(toks[:1]); self.r = R(toks[1:])
                if "saveexec" in op: self.w += [("exec", 0)]
        else:
            raise ValueError("unknown instr " + text)

    def is_dpp(self): return "dpp" in self.text or "row_" in self.text or "quad_perm" in self.text
    def is_trans(self): return self.op.split("_e")[0] in TRANS or self.op in TRANS
    def is_dot(self): return self.op.startswith("v_dot")
    def is_permlane(self): return self.op.startswith("v_permlane")
    def is_rdlane(self): return self.op.startswith(("v_readlane", "v_readfirstlane"))
    def wide_store(self):
        return self.cls == "vmem" and ("store" in self.op) and (self.op.endswith("x4") or self.op.endswith("x3"))

def need(p, c):
    n = 0
    pw = set(p.w); cr = set(c.r); cw = set(c.w)
    pwv = {x for x in pw if x[0] in "va"}
    pws = {x for x in pw if x[0] in ("s", "vcc")}
    mf = ("xdl", "sgemm")
    if p.cls == "valu":
        if c.cls in mf and pwv & cr: n = max(n, 2)
        if c.cls == "valu":
            if p.is_trans() and not c.is_trans() and pwv & cr: n = max(n, 1)
            if c.is_permlane() and pwv & cr: n = max(n, 2)
            if c.is_dpp() and pwv & cr: n = max(n, 2)
            if c.is_rdlane() and pwv & cr: n = max(n, 1)
            if pws & cr:
                n = max(n, 4 if (c.is_rdlane() or c.op.startswith(("v_writelane", "v_div_fmas"))) else 2)
            if ("exec", 0) in pw: n = max(n, 5)
        if c.cls == "vmem" and pws & cr: n = max(n, 5)
        if c.cls == "salu" and pws & cr: n = max(n, 1)
        if p.is_dot():
            if c.cls == "valu" and c.op == p.op:
                ab = set(c.r[:-1]) if False else None
                toks = [x.strip() for x in c.text.split(";")[0].split(None, 1)[1].split(",")]
                abr = set(regs_of(toks[1].split()[0]) + regs_of(toks[2].split()[0]))
                if pwv & abr: n = max(n, 3)
            elif pwv & (cr | cw): n = max(n, 3)
    if p.cls == "xdl":
        t_rd = {2: 5, 4: 8, 8: 12, 16: 20}[p.passes]
        if c.cls in mf:
            if pwv & set(c.ab): n = max(n, t_rd)
            if pwv & set(c.srcC):
                if c.cls == "xdl" and set(c.srcC) == pwv and c.passes == p.passes:
                    n = max(n, 2 if p.passes == 2 else 0)
                else:
                    n = max(n, {2: 4, 4: 6, 8: 10, 16: 18}[p.passes])
            if pwv & cw and not (pwv & set(c.srcC)):
                n = max(n, t_rd)
        elif pwv & (cr | cw): n = max(n, t_rd)
        if c.cls == "valu" and set(p.srcC) & cw: n = max(n, {2: 1, 4: 3, 8: 7, 16: 15}[p.passes])
    if p.cls == "sgemm":
        t_rd = {2: 4, 4: 6, 8: 10, 16: 18}[p.passes]
        if c.cls in mf:
            if pwv & set(c.ab): n = max(n, t_rd)
            if pwv & set(c.srcC):
                if c.cls == "sgemm" and set(c.srcC) == pwv: n = max(n, 2 if p.passes == 2 else 0)
                elif c.cls == "xdl": n = max(n, 0)
                else: n = max(n, {2: 2, 4: 4, 8: 8, 16: 16}[p.passes])
            if pwv & cw and not (pwv & set(c.srcC)):
                n = max(n, t_rd)
        elif pwv & (cr | cw): n = max(n, t_rd)
    if p.wide_store() and c.cls == "valu" and set(p.r) & cw: n = max(n, 2)
    if p.wide_store() and c.cls != "valu" and set(p.r) & cw: n = max(n, 1)
    if p.cls == "salu" and ("m0", 0) in pw and (c.cls == "vmem" and ("lds" in c.text)): n = max(n, 1)
    return n

class Prog:
    def __init__(self):
        self.lines = []
        self.hist = []
        self.pos = 0
        self.vm = []
        self.nvm = 0
        self.nops_inserted = 0
    def raw(self, s):
        self.lines.append(s)
    def comment(self, s):
        self.lines.append("    ; " + s)
    def label(self, name):
        self.lines.append(name + ":")
    def flush(self, n=20):
        mx = 0
        for (p, ppos) in self.hist:
            win = 0
            if p.cls in ("xdl", "sgemm"): win = {2: 5, 4: 8, 8: 12, 16: 20}[p.passes]
            elif p.cls == "valu": win = 5
            elif p.cls in ("vmem",): win = 2
            rem = win - (self.pos - ppos)
            mx = max(mx, rem)
        while mx > 0:
            k = min(mx, 16)
            self._emit(Ins(f"s_nop {k-1}")); mx -= k
    def _emit(self, ins):
        self.lines.append("    " + ins.text)
        self.pos += ins.states
        self.hist.append((ins, self.pos))
        if len(self.hist) > 40: self.hist.pop(0)
    def __call__(self, text, tag=None):
        ins = Ins(text)
        mx = 0
        for (p, ppos) in self.hist:
            nd = need(p, ins)
            if nd:
                have = self.pos - ppos
                mx = max(mx, nd - have)
        while mx > 0:
            k = min(mx, 16)
            self._emit(Ins(f"s_nop {k-1}")); mx -= k; self.nops_inserted += k
        self._emit(ins)
        if ins.cls == "vmem":
            self.nvm += 1
            self.vm.append((tag, self.nvm))
        return ins
    def wait_vm(self, tag, extra=""):
        idx = max(n for (t, n) in self.vm if t == tag)
        cnt = self.nvm - idx
        assert cnt <= 63
        self(f"s_waitcnt vmcnt({cnt}){extra}")
    def text(self):
        return "\n".join(self.lines) + "\n"
```

```python
import struct, sys, math
from asmdsl import Prog

def f32bits(x):
    return struct.unpack("<I", struct.pack("<f", x))[0]
def f32(x):
    return struct.unpack("<f", struct.pack("<f", x))[0]

NAME = "standalone__linear_kernel_rfa__decode"
HEADER = open("cdna_kernels/%s.s.ref" % NAME).read().split("; Override launch")[0]

def gen(nt="", NW=8):
    NT = 1024 // NW // 32
    assert NT == 4
    p = Prog()
    LOG2E = 1.4426950408889634
    L1b = f32bits(LOG2E) & 0xFFFFFF00
    L1 = struct.unpack("<f", struct.pack("<I", L1b))[0]
    L2b = f32bits(LOG2E - L1)
    SCALE = f32bits(128.0 ** -0.25)
    CM = f32bits(8.0 ** -0.5)
    EPS = f32bits(1e-6)
    vL, vKoff, vVoff, vM, vOne = 1, 2, 3, 4, 5
    vClampLo = 6
    ONESB = 8
    W = 12
    KV = 28
    Z = 60
    PHI = 64
    P = 80
    S = 88
    SQ = 96
    T = 98
    BUF = 128
    sK, sV, sOm, sQ, sWs, sOut, sDbg = 20, 24, 28, 32, 36, 40, 44
    sWave, sHead, sQuart = 48, 49, 50
    sScale, sSelLo, sSelHi, sL1, sL2, sCM, sEPS, sClampHi = 52, 54, 55, 56, 57, 58, 59, 61
    sTB = 64
    sPQ = 72

    def vr(a, n): return f"v[{a}:{a+n-1}]"
    def sr(a, n): return f"s[{a}:{a+n-1}]"

    p("s_cmp_ge_u32 s2, 256")
    p("s_cbranch_scc1 L_end")
    p("s_load_dwordx8 s[4:11], s[0:1], 0")
    p("s_load_dwordx4 s[12:15], s[0:1], 32")
    p("s_load_dwordx2 s[16:17], s[0:1], 48")
    p(f"v_and_b32 v{vL}, 63, v0")
    p(f"v_lshrrev_b32 v{vM}, 6, v0")
    p(f"v_readfirstlane_b32 s{sWave}, v{vM}")
    p(f"v_and_b32 v{T}, 3, v{vL}")
    p(f"v_lshlrev_b32 v{T}, 11, v{T}")
    p(f"v_bfe_u32 v{T+1}, v{vL}, 2, 2")
    p(f"v_lshlrev_b32 v{T+1}, 8, v{T+1}")
    p(f"v_lshrrev_b32 v{T+2}, 4, v{vL}")
    p(f"v_lshlrev_b32 v{T+2}, 4, v{T+2}")
    p(f"v_add3_u32 v{vKoff}, v{T}, v{T+1}, v{T+2}")
    p(f"v_lshlrev_b32 v{vVoff}, 4, v{vL}")
    p(f"v_and_b32 v{T+3}, 15, v{vL}")
    p(f"v_lshl_add_u32 v{T+3}, v{T+3}, 8, v{T+2}")
    p(f"s_lshr_b32 s{sHead}, s2, 2")
    p(f"s_and_b32 s{sQuart}, s2, 3")
    p(f"s_lshl_b32 s3, s{sWave}, 13")
    for t in range(NT):
        p(f"s_add_u32 s{sTB+t}, s3, {t*NW*8192}")
        p(f"s_add_u32 s{sTB+4+t}, s3, {t*NW*8192+4096}")
    p(f"s_lshl_b32 s3, s2, 18")
    p("s_waitcnt lgkmcnt(0)")
    p(f"s_add_u32 s{sK}, s6, s3"); p(f"s_addc_u32 s{sK+1}, s7, 0")
    p(f"s_mov_b32 s{sK+2}, 0x40000"); p(f"s_mov_b32 s{sK+3}, 0x20000")
    p(f"s_add_u32 s{sV}, s8, s3"); p(f"s_addc_u32 s{sV+1}, s9, 0")
    p(f"s_mov_b32 s{sV+2}, 0x40000"); p(f"s_mov_b32 s{sV+3}, 0x20000")
    p(f"s_mov_b32 s{sOm}, s10"); p(f"s_mov_b32 s{sOm+1}, s11")
    p(f"s_mov_b32 s{sOm+2}, 2048"); p(f"s_mov_b32 s{sOm+3}, 0x20000")
    p(f"s_lshl_b32 s3, s{sHead}, 8")
    p(f"s_add_u32 s{sQ}, s4, s3"); p(f"s_addc_u32 s{sQ+1}, s5, 0")
    p(f"s_mov_b32 s{sQ+2}, 256"); p(f"s_mov_b32 s{sQ+3}, 0x20000")
    for kk in range(4):
        p(f"buffer_load_dwordx4 {vr(W+4*kk,4)}, v{T+3}, {sr(sOm,4)}, 0 offen offset:{kk*64}", tag="om")
    QB = T + 8
    for kk in range(4):
        p(f"buffer_load_dwordx4 {vr(QB+4*kk,4)}, v{T+2}, {sr(sQ,4)}, 0 offen offset:{kk*64}", tag="q")
    def loadK(t, buf):
        for b in range(2):
            for kk in range(4):
                p(f"buffer_load_dwordx4 {vr(buf+16*b+4*kk,4)}, v{vKoff}, {sr(sK,4)}, s{sTB+t} offen offset:{b*1024+kk*64}{nt}", tag=f"K{t}{b}")
    def loadV(t, buf):
        for r in range(8):
            b, rho = r >> 2, r & 3
            sg = 2 * rho + b
            so = sTB + t if sg < 4 else sTB + 4 + t
            p(f"buffer_load_dwordx4 {vr(buf+4*r,4)}, v{vVoff}, {sr(sV,4)}, s{so} offen offset:{(sg&3)*1024}{nt}", tag=f"V{t}")
    for t in range(NT):
        loadK(t, BUF + 32 * t)
    p(f"s_add_u32 s{sOut}, s12, s3"); p(f"s_addc_u32 s{sOut+1}, s13, 0")
    p(f"s_mov_b32 s{sOut+2}, 256"); p(f"s_mov_b32 s{sOut+3}, 0x20000")
    p(f"s_mov_b32 s{sDbg}, s14"); p(f"s_mov_b32 s{sDbg+1}, s15")
    p(f"s_mov_b32 s{sDbg+2}, 256"); p(f"s_mov_b32 s{sDbg+3}, 0x20000")
    p(f"s_lshl_b32 s3, s{sHead}, 15")
    p(f"s_add_u32 s{sWs}, s16, s3"); p(f"s_addc_u32 s{sWs+1}, s17, 0")
    p(f"s_mov_b32 s{sWs+2}, 0x8000"); p(f"s_mov_b32 s{sWs+3}, 0x20000")
    p(f"s_mov_b32 s{sScale}, {SCALE:#x}"); p(f"s_mov_b32 s{sScale+1}, {SCALE:#x}")
    p(f"s_mov_b32 s{sSelLo}, 0x05040100"); p(f"s_mov_b32 s{sSelHi}, 0x07060302")
    p(f"s_mov_b32 s{sL1}, {L1b:#x}"); p(f"s_mov_b32 s{sL2}, {L2b:#x}")
    p(f"s_mov_b32 s{sCM}, {CM:#x}"); p(f"s_mov_b32 s{sEPS}, {EPS:#x}")
    p(f"s_mov_b32 s{sClampHi}, {f32bits(200.0):#x}")
    p(f"v_mov_b32 v{vClampLo}, {f32bits(-200.0):#x}")
    p(f"v_mov_b32 v{vOne}, 1.0")
    for i in range(4): p(f"v_mov_b32 v{ONESB+i}, 0x3f803f80")
    for i in range(36): p(f"v_mov_b32 v{KV+i}, 0")

    def kblock(X, Pd, Sd, sq, tmp):
        for kk in range(4):
            for c in range(4):
                x = X + 4 * kk + c
                p(f"v_lshlrev_b32 v{tmp+2*c}, 16, v{x}")
                p(f"v_and_b32 v{tmp+2*c+1}, 0xffff0000, v{x}")
            for c in range(4):
                p(f"v_pk_mul_f32 {vr(tmp+2*c,2)}, {vr(tmp+2*c,2)}, {sr(sScale,2)}")
            for c in range(4):
                x = X + 4 * kk + c
                p(f"v_cvt_pk_bf16_f32 v{x}, v{tmp+2*c}, v{tmp+2*c+1}")
            for c in range(4):
                x = X + 4 * kk + c
                src2 = "0" if (kk == 0 and c == 0) else f"v{sq}"
                p(f"v_dot2_f32_bf16 v{sq}, v{x}, v{x}, {src2}")
            cc = "0" if kk == 0 else vr(Pd, 4)
            p(f"v_mfma_f32_16x16x32_bf16 {vr(Pd,4)}, {vr(X+4*kk,4)}, {vr(W+4*kk,4)}, {cc}")
        p(f"v_mfma_f32_16x16x4_f32 {vr(Sd,4)}, v{sq}, v{vOne}, 0")

    def rnd4(a, tmp):
        p(f"v_cvt_pk_bf16_f32 v{tmp}, v{a}, v{a+1}")
        p(f"v_cvt_pk_bf16_f32 v{tmp+1}, v{a+2}, v{a+3}")
        p(f"v_lshlrev_b32 v{a}, 16, v{tmp}")
        p(f"v_and_b32 v{a+1}, 0xffff0000, v{tmp}")
        p(f"v_lshlrev_b32 v{a+2}, 16, v{tmp+1}")
        p(f"v_and_b32 v{a+3}, 0xffff0000, v{tmp+1}")

    def phi(Pd, Sd, out2, tmp):
        rnd4(Pd, tmp); rnd4(Sd, tmp + 2)
        for i in range(4): p(f"v_fma_f32 v{Pd+i}, v{Sd+i}, -0.5, v{Pd+i}")
        rnd4(Pd, tmp)
        for i in range(4): p(f"v_med3_f32 v{Pd+i}, v{Pd+i}, v{vClampLo}, s{sClampHi}")
        for i in range(4): p(f"v_mul_f32 v{Sd+i}, s{sL1}, v{Pd+i}")
        for i in range(4): p(f"v_rndne_f32 v{tmp+i}, v{Sd+i}")
        for i in range(4): p(f"v_sub_f32 v{Sd+i}, v{Sd+i}, v{tmp+i}")
        for i in range(4): p(f"v_fma_f32 v{Sd+i}, v{Pd+i}, s{sL2}, v{Sd+i}")
        for i in range(4): p(f"v_cvt_i32_f32 v{tmp+i}, v{tmp+i}")
        for i in range(4): p(f"v_exp_f32 v{Sd+i}, v{Sd+i}")
        for i in range(4): p(f"v_ldexp_f32 v{Pd+i}, v{Sd+i}, v{tmp+i}")
        rnd4(Pd, tmp)
        for i in range(4): p(f"v_mul_f32 v{Pd+i}, s{sCM}, v{Pd+i}")
        rnd4(Pd, tmp)
        for i in range(4): p(f"v_add_f32 v{Pd+i}, s{sEPS}, v{Pd+i}")
        p(f"v_cvt_pk_bf16_f32 v{out2}, v{Pd}, v{Pd+1}")
        p(f"v_cvt_pk_bf16_f32 v{out2+1}, v{Pd+2}, v{Pd+3}")

    p.wait_vm("q")
    kblock(QB, P, S, SQ, T)
    phi(P, S, T + 4, T)
    p(f"v_lshlrev_b32 v{T+4}, 16, v{T+4}")
    for m in range(8):
        p(f"v_readlane_b32 s{sPQ+m}, v{T+4}, {m}")

    for t in range(NT):
        buf = BUF + 32 * t
        for b in range(2):
            p.wait_vm(f"K{t}{b}")
            kblock(buf + 16 * b, P + 4 * b, S + 4 * b, SQ + b, T + 8 * b)
        loadV(t, buf)
        for b in range(2):
            phi(P + 4 * b, S + 4 * b, PHI + 4 * t + 2 * b, T + 16)
    for t in range(NT):
        buf = BUF + 32 * t
        p.wait_vm(f"V{t}")
        A = vr(PHI + 4 * t, 4)
        p(f"v_mfma_f32_16x16x32_bf16 {vr(Z,4)}, {A}, {vr(ONESB,4)}, {vr(Z,4)}")
        for c in range(4):
            tb = T + 8 * (c & 1)
            for i in range(4):
                r0 = buf + 4 * (2 * i) + c; r1 = buf + 4 * (2 * i + 1) + c
                p(f"v_perm_b32 v{tb+i}, v{r1}, v{r0}, s{sSelLo}")
                p(f"v_perm_b32 v{tb+4+i}, v{r1}, v{r0}, s{sSelHi}")
            e0 = 2 * c
            p(f"v_mfma_f32_16x16x32_bf16 {vr(KV+4*e0,4)}, {A}, {vr(tb,4)}, {vr(KV+4*e0,4)}")
            p(f"v_mfma_f32_16x16x32_bf16 {vr(KV+4*e0+4,4)}, {A}, {vr(tb+4,4)}, {vr(KV+4*e0+4,4)}")
    p(f"s_lshl_b32 s3, s{sWave}, 12")
    p(f"v_add_u32 v{T}, s3, v{vVoff}")
    for e in range(0, 8, 2):
        for i in range(4):
            p(f"v_permlane32_swap_b32 v{KV+4*e+i}, v{KV+4*e+4+i}")
        p(f"ds_write_b128 v{T}, {vr(KV+4*e,4)} offset:{e*512}")
    p(f"s_lshl_b32 s3, s{sWave}, 5")
    p(f"v_add_u32 v{T+1}, s3, v{vL}")
    p("s_mov_b64 exec, 0x00010001")
    p(f"ds_write_b128 v{T+1}, {vr(Z,4)} offset:32768")
    p("s_mov_b64 exec, -1")
    p("s_waitcnt lgkmcnt(0)")
    p("s_barrier")
    p(f"s_cmp_ge_u32 s{sWave}, 2")
    p("s_cbranch_scc1 L_end")
    p(f"v_lshrrev_b32 v{T}, 4, v{vL}")
    p(f"v_lshlrev_b32 v{T}, 9, v{T}")
    p(f"v_and_b32 v{T+1}, 15, v{vL}")
    p(f"v_lshl_add_u32 v{T}, v{T+1}, 4, v{T}")
    p(f"s_lshl_b32 s3, s{sWave}, 11")
    p(f"v_add_u32 v{T}, s3, v{T}")
    p(f"v_mov_b32 v{T+1}, 0")
    R = BUF
    for w in range(NW):
        p(f"ds_read_b128 {vr(R+16*w,4)}, v{T} offset:{w*4096}")
        p(f"ds_read_b128 {vr(R+16*w+4,4)}, v{T} offset:{w*4096+256}")
        p(f"ds_read_b128 {vr(R+16*w+8,4)}, v{T+1} offset:{32768+w*32}")
        p(f"ds_read_b128 {vr(R+16*w+12,4)}, v{T+1} offset:{32768+w*32+16}")
        if w == 3:
            pass
    ACC = KV
    for w in range(NW):
        rem = (NW - 1 - w) * 4
        p(f"s_waitcnt lgkmcnt({min(rem,15)})")
        for i in range(16):
            if w == 0: p(f"v_mov_b32 v{ACC+i}, v{R+i}")
            else: p(f"v_add_f32 v{ACC+i}, v{ACC+i}, v{R+16*w+i}")
    p(f"s_lshl_b32 s3, s{sQuart}, 13")
    p(f"s_lshl_b32 s51, s{sWave}, 12")
    p(f"s_add_u32 s3, s3, s51")
    p(f"v_lshlrev_b32 v{T}, 5, v{vL}")
    p(f"buffer_store_dwordx4 {vr(ACC,4)}, v{T}, {sr(sWs,4)}, s3 offen sc1")
    p(f"buffer_store_dwordx4 {vr(ACC+4,4)}, v{T}, {sr(sWs,4)}, s3 offen offset:16 sc1")
    p("s_mov_b64 exec, 1")
    p(f"buffer_store_dwordx4 {vr(ACC+8,4)}, v{T}, {sr(sWs,4)}, s3 offen offset:2048 sc1")
    p(f"buffer_store_dwordx4 {vr(ACC+12,4)}, v{T}, {sr(sWs,4)}, s3 offen offset:2064 sc1")
    p(f"s_lshl_b32 s3, s{sWave}, 4")
    p(f"s_lshl_b32 s3, 1, s3")
    p(f"v_mov_b32 v{T+1}, s3")
    p(f"s_lshl_b32 s3, s{sHead}, 2")
    p(f"v_mov_b32 v{T+2}, s3")
    p("s_waitcnt vmcnt(0)")
    p(f"buffer_atomic_add v{T+1}, v{T+2}, {sr(sDbg,4)}, 0 offen sc0")
    p("s_waitcnt vmcnt(0)")
    p(f"v_readfirstlane_b32 s3, v{T+1}")
    p("s_mov_b64 exec, -1")
    p(f"s_lshl_b32 s51, s{sWave}, 4")
    p(f"s_lshr_b32 s3, s3, s51")
    p(f"s_and_b32 s3, s3, 0xffff")
    p("s_cmp_lg_u32 s3, 3")
    p("s_cbranch_scc1 L_end")
    p(f"s_lshl_b32 s3, s{sWave}, 12")
    p(f"v_mov_b32 v{T+1}, 0")
    for qq in range(4):
        p(f"s_add_u32 s51, s3, {qq*8192}")
        p(f"buffer_load_dwordx4 {vr(R+16*qq,4)}, v{T}, {sr(sWs,4)}, s51 offen sc1")
        p(f"buffer_load_dwordx4 {vr(R+16*qq+4,4)}, v{T}, {sr(sWs,4)}, s51 offen offset:16 sc1")
        p(f"buffer_load_dwordx4 {vr(R+16*qq+8,4)}, v{T+1}, {sr(sWs,4)}, s51 offen offset:2048 sc1")
        p(f"buffer_load_dwordx4 {vr(R+16*qq+12,4)}, v{T+1}, {sr(sWs,4)}, s51 offen offset:2064 sc1")
    p("s_waitcnt vmcnt(0)")
    for qq in range(1, 4):
        for i in range(16):
            p(f"v_add_f32 v{R+i}, v{R+i}, v{R+16*qq+i}")
    for i in range(0, 16, 4): rnd4(R + i, T + 4)
    NUM, DEN = T + 8, T + 9
    p(f"v_mul_f32 v{NUM}, s{sPQ}, v{R}")
    p(f"v_mul_f32 v{DEN}, s{sPQ}, v{R+8}")
    for m in range(1, 8):
        p(f"v_fma_f32 v{NUM}, s{sPQ+m}, v{R+m}, v{NUM}")
        p(f"v_fma_f32 v{DEN}, s{sPQ+m}, v{R+8+m}, v{DEN}")
    p(f"v_cvt_pk_bf16_f32 v{T+4}, v{NUM}, v{DEN}")
    p(f"v_lshlrev_b32 v{NUM}, 16, v{T+4}")
    p(f"v_and_b32 v{DEN}, 0xffff0000, v{T+4}")
    p(f"v_add_f32 v{DEN}, s{sEPS}, v{DEN}")
    p(f"v_cvt_pk_bf16_f32 v{T+4}, v{DEN}, v{DEN}")
    p(f"v_lshlrev_b32 v{DEN}, 16, v{T+4}")
    a, b_, c_, d_, e_ = T + 10, T + 11, T + 12, T + 13, T + 14
    p(f"v_div_scale_f32 v{a}, s[80:81], v{DEN}, v{DEN}, v{NUM}")
    p(f"v_div_scale_f32 v{b_}, vcc, v{NUM}, v{DEN}, v{NUM}")
    p(f"v_rcp_f32 v{c_}, v{a}")
    p(f"v_fma_f32 v{d_}, -v{a}, v{c_}, 1.0")
    p(f"v_fma_f32 v{c_}, v{d_}, v{c_}, v{c_}")
    p(f"v_mul_f32 v{d_}, v{b_}, v{c_}")
    p(f"v_fma_f32 v{e_}, -v{a}, v{d_}, v{b_}")
    p(f"v_fma_f32 v{d_}, v{e_}, v{c_}, v{d_}")
    p(f"v_fma_f32 v{a}, -v{a}, v{d_}, v{b_}")
    p(f"v_div_fmas_f32 v{a}, v{a}, v{c_}, v{d_}")
    p(f"v_div_fixup_f32 v{a}, v{a}, v{DEN}, v{NUM}")
    p(f"v_cvt_pk_bf16_f32 v{a}, v{a}, v{a}")
    p(f"v_and_b32 v{b_}, 15, v{vL}")
    p(f"v_lshlrev_b32 v{b_}, 4, v{b_}")
    p(f"v_lshrrev_b32 v{c_}, 4, v{vL}")
    p(f"v_lshl_add_u32 v{b_}, v{c_}, 1, v{b_}")
    p(f"s_lshl_b32 s3, s{sWave}, 3")
    p(f"buffer_store_short v{a}, v{b_}, {sr(sOut,4)}, s3 offen")
    p.label("L_end")
    p("s_endpgm")

    lds = NW * 4096 + NW * 32
    out = HEADER
    out += f"; @launch grid=(256,1,1) block=({NW*64},1,1) lds={lds}\n"
    out += f""".amdgcn_target "amdgcn-amd-amdhsa--gfx950"
.text
.globl {NAME}_kernel
.p2align 8
.type {NAME}_kernel,@function
{NAME}_kernel:
"""
    out += p.text()
    out += f""".section .rodata,"a"
.p2align 6
.amdhsa_kernel {NAME}_kernel
  .amdhsa_next_free_vgpr 256
  .amdhsa_next_free_sgpr 96
  .amdhsa_accum_offset 256
  .amdhsa_group_segment_fixed_size 0
  .amdhsa_kernarg_size 56
  .amdhsa_user_sgpr_count 2
  .amdhsa_user_sgpr_kernarg_segment_ptr 1
  .amdhsa_system_sgpr_workgroup_id_x 1
  .amdhsa_float_denorm_mode_32 3
.end_amdhsa_kernel
"""
    return out, p

if __name__ == "__main__":
    nt = " nt" if (len(sys.argv) > 2 and sys.argv[2] == "nt") else ""
    txt, p = gen(nt=nt)
    open(sys.argv[1], "w").write(txt)
    print("nops inserted:", p.nops_inserted, "lines", len(p.lines))
```

```python
import struct, sys, math
from asmdsl import Prog

def f32bits(x):
    return struct.unpack("<I", struct.pack("<f", x))[0]
def f32(x):
    return struct.unpack("<f", struct.pack("<f", x))[0]

NAME = "standalone__linear_kernel_rfa__decode"
HEADER = open("cdna_kernels/%s.s.ref" % NAME).read().split("; Override launch")[0]

def gen(nt="", NW=8, diag=False):
    NT = 1024 // NW // 32
    assert NT == 4
    p = Prog()
    LOG2E = 1.4426950408889634
    L1b = f32bits(LOG2E) & 0xFFFFFF00
    L1 = struct.unpack("<f", struct.pack("<I", L1b))[0]
    L2b = f32bits(LOG2E - L1)
    SCALE = f32bits(128.0 ** -0.25)
    CM = f32bits(8.0 ** -0.5)
    EPS = f32bits(1e-6)
    vL, vKoff, vVoff, vM, vOne = 1, 2, 3, 4, 5
    vClampLo = 6
    ONESB = 8
    W = 12
    KV = 28
    Z = 60
    PHI = 64
    P = 80
    S = 88
    SQ = 96
    T = 98
    BUF = 128
    sK, sV, sOm, sQ, sWs, sOut, sDbg = 20, 24, 28, 32, 36, 40, 44
    sWave, sHead, sQuart = 48, 49, 50
    sScale, sSelLo, sSelHi, sL1, sL2, sCM, sEPS, sClampHi = 52, 54, 55, 56, 57, 58, 59, 61
    sTB = 64
    sPQ = 72

    def vr(a, n): return f"v[{a}:{a+n-1}]"
    def sr(a, n): return f"s[{a}:{a+n-1}]"

    p("s_cmp_ge_u32 s2, 256")
    p("s_cbranch_scc1 L_end")
    p("s_load_dwordx8 s[4:11], s[0:1], 0")
    p("s_load_dwordx4 s[12:15], s[0:1], 32")
    p("s_load_dwordx2 s[16:17], s[0:1], 48")
    if diag:
        p("s_memrealtime s[84:85]")
        p("s_memtime s[86:87]")
    p(f"v_and_b32 v{vL}, 63, v0")
    p(f"v_lshrrev_b32 v{vM}, 6, v0")
    p(f"v_readfirstlane_b32 s{sWave}, v{vM}")
    p(f"v_and_b32 v{T}, 3, v{vL}")
    p(f"v_lshlrev_b32 v{T}, 11, v{T}")
    p(f"v_bfe_u32 v{T+1}, v{vL}, 2, 2")
    p(f"v_lshlrev_b32 v{T+1}, 8, v{T+1}")
    p(f"v_lshrrev_b32 v{T+2}, 4, v{vL}")
    p(f"v_lshlrev_b32 v{T+2}, 4, v{T+2}")
    p(f"v_add3_u32 v{vKoff}, v{T}, v{T+1}, v{T+2}")
    p(f"v_lshlrev_b32 v{vVoff}, 4, v{vL}")
    p(f"v_and_b32 v{T+3}, 15, v{vL}")
    p(f"v_lshl_add_u32 v{T+3}, v{T+3}, 8, v{T+2}")
    p(f"s_lshr_b32 s{sHead}, s2, 2")
    p(f"s_and_b32 s{sQuart}, s2, 3")
    p(f"s_lshl_b32 s3, s{sWave}, 13")
    for t in range(NT):
        p(f"s_add_u32 s{sTB+t}, s3, {t*NW*8192}")
        p(f"s_add_u32 s{sTB+4+t}, s3, {t*NW*8192+4096}")
    p(f"s_lshl_b32 s3, s2, 18")
    p("s_waitcnt lgkmcnt(0)")
    p(f"s_add_u32 s{sK}, s6, s3"); p(f"s_addc_u32 s{sK+1}, s7, 0")
    p(f"s_mov_b32 s{sK+2}, 0x40000"); p(f"s_mov_b32 s{sK+3}, 0x20000")
    p(f"s_add_u32 s{sV}, s8, s3"); p(f"s_addc_u32 s{sV+1}, s9, 0")
    p(f"s_mov_b32 s{sV+2}, 0x40000"); p(f"s_mov_b32 s{sV+3}, 0x20000")
    p(f"s_mov_b32 s{sOm}, s10"); p(f"s_mov_b32 s{sOm+1}, s11")
    p(f"s_mov_b32 s{sOm+2}, 2048"); p(f"s_mov_b32 s{sOm+3}, 0x20000")
    p(f"s_lshl_b32 s3, s{sHead}, 8")
    p(f"s_add_u32 s{sQ}, s4, s3"); p(f"s_addc_u32 s{sQ+1}, s5, 0")
    p(f"s_mov_b32 s{sQ+2}, 256"); p(f"s_mov_b32 s{sQ+3}, 0x20000")
    for kk in range(4):
        p(f"buffer_load_dwordx4 {vr(W+4*kk,4)}, v{T+3}, {sr(sOm,4)}, 0 offen offset:{kk*64}", tag="om")
    QB = T + 8
    for kk in range(4):
        p(f"buffer_load_dwordx4 {vr(QB+4*kk,4)}, v{T+2}, {sr(sQ,4)}, 0 offen offset:{kk*64}", tag="q")
    def loadK(t, buf):
        for b in range(2):
            for kk in range(4):
                p(f"buffer_load_dwordx4 {vr(buf+16*b+4*kk,4)}, v{vKoff}, {sr(sK,4)}, s{sTB+t} offen offset:{b*1024+kk*64}{nt}", tag=f"K{t}{b}")
    def loadV(t, buf):
        for r in range(8):
            b, rho = r >> 2, r & 3
            sg = 2 * rho + b
            so = sTB + t if sg < 4 else sTB + 4 + t
            p(f"buffer_load_dwordx4 {vr(buf+4*r,4)}, v{vVoff}, {sr(sV,4)}, s{so} offen offset:{(sg&3)*1024}{nt}", tag=f"V{t}")
    for t in range(NT):
        loadK(t, BUF + 32 * t)
    p(f"s_add_u32 s{sOut}, s12, s3"); p(f"s_addc_u32 s{sOut+1}, s13, 0")
    p(f"s_mov_b32 s{sOut+2}, 256"); p(f"s_mov_b32 s{sOut+3}, 0x20000")
    p(f"s_mov_b32 s{sDbg}, s14"); p(f"s_mov_b32 s{sDbg+1}, s15")
    p(f"s_mov_b32 s{sDbg+2}, 256"); p(f"s_mov_b32 s{sDbg+3}, 0x20000")
    p(f"s_lshl_b32 s3, s{sHead}, 15")
    p(f"s_add_u32 s{sWs}, s16, s3"); p(f"s_addc_u32 s{sWs+1}, s17, 0")
    p(f"s_mov_b32 s{sWs+2}, 0x8000"); p(f"s_mov_b32 s{sWs+3}, 0x20000")
    p(f"s_mov_b32 s{sScale}, {SCALE:#x}"); p(f"s_mov_b32 s{sScale+1}, {SCALE:#x}")
    p(f"s_mov_b32 s{sSelLo}, 0x05040100"); p(f"s_mov_b32 s{sSelHi}, 0x07060302")
    p(f"s_mov_b32 s{sL1}, {L1b:#x}"); p(f"s_mov_b32 s{sL2}, {L2b:#x}")
    p(f"s_mov_b32 s{sCM}, {CM:#x}"); p(f"s_mov_b32 s{sEPS}, {EPS:#x}")
    p(f"s_mov_b32 s{sClampHi}, {f32bits(200.0):#x}")
    p(f"v_mov_b32 v{vClampLo}, {f32bits(-200.0):#x}")
    p(f"v_mov_b32 v{vOne}, 1.0")
    for i in range(4): p(f"v_mov_b32 v{ONESB+i}, 0x3f803f80")
    for i in range(36): p(f"v_mov_b32 v{KV+i}, 0")

    def kblock(X, Pd, Sd, sq, tmp):
        for kk in range(4):
            for c in range(4):
                x = X + 4 * kk + c
                p(f"v_lshlrev_b32 v{tmp+2*c}, 16, v{x}")
                p(f"v_and_b32 v{tmp+2*c+1}, 0xffff0000, v{x}")
            for c in range(4):
                p(f"v_pk_mul_f32 {vr(tmp+2*c,2)}, {vr(tmp+2*c,2)}, {sr(sScale,2)}")
            for c in range(4):
                x = X + 4 * kk + c
                p(f"v_cvt_pk_bf16_f32 v{x}, v{tmp+2*c}, v{tmp+2*c+1}")
            for c in range(4):
                x = X + 4 * kk + c
                src2 = "0" if (kk == 0 and c == 0) else f"v{sq}"
                p(f"v_dot2_f32_bf16 v{sq}, v{x}, v{x}, {src2}")
            cc = "0" if kk == 0 else vr(Pd, 4)
            p(f"v_mfma_f32_16x16x32_bf16 {vr(Pd,4)}, {vr(X+4*kk,4)}, {vr(W+4*kk,4)}, {cc}")
        p(f"v_mfma_f32_16x16x4_f32 {vr(Sd,4)}, v{sq}, v{vOne}, 0")

    def rnd4(a, tmp):
        p(f"v_cvt_pk_bf16_f32 v{tmp}, v{a}, v{a+1}")
        p(f"v_cvt_pk_bf16_f32 v{tmp+1}, v{a+2}, v{a+3}")
        p(f"v_lshlrev_b32 v{a}, 16, v{tmp}")
        p(f"v_and_b32 v{a+1}, 0xffff0000, v{tmp}")
        p(f"v_lshlrev_b32 v{a+2}, 16, v{tmp+1}")
        p(f"v_and_b32 v{a+3}, 0xffff0000, v{tmp+1}")

    def phi(Pd, Sd, out2, tmp):
        rnd4(Pd, tmp); rnd4(Sd, tmp + 2)
        for i in range(4): p(f"v_fma_f32 v{Pd+i}, v{Sd+i}, -0.5, v{Pd+i}")
        rnd4(Pd, tmp)
        for i in range(4): p(f"v_med3_f32 v{Pd+i}, v{Pd+i}, v{vClampLo}, s{sClampHi}")
        for i in range(4): p(f"v_mul_f32 v{Sd+i}, s{sL1}, v{Pd+i}")
        for i in range(4): p(f"v_rndne_f32 v{tmp+i}, v{Sd+i}")
        for i in range(4): p(f"v_sub_f32 v{Sd+i}, v{Sd+i}, v{tmp+i}")
        for i in range(4): p(f"v_fma_f32 v{Sd+i}, v{Pd+i}, s{sL2}, v{Sd+i}")
        for i in range(4): p(f"v_cvt_i32_f32 v{tmp+i}, v{tmp+i}")
        for i in range(4): p(f"v_exp_f32 v{Sd+i}, v{Sd+i}")
        for i in range(4): p(f"v_ldexp_f32 v{Pd+i}, v{Sd+i}, v{tmp+i}")
        rnd4(Pd, tmp)
        for i in range(4): p(f"v_mul_f32 v{Pd+i}, s{sCM}, v{Pd+i}")
        rnd4(Pd, tmp)
        for i in range(4): p(f"v_add_f32 v{Pd+i}, s{sEPS}, v{Pd+i}")
        p(f"v_cvt_pk_bf16_f32 v{out2}, v{Pd}, v{Pd+1}")
        p(f"v_cvt_pk_bf16_f32 v{out2+1}, v{Pd+2}, v{Pd+3}")

    p.wait_vm("q")
    kblock(QB, P, S, SQ, T)
    phi(P, S, T + 4, T)
    p(f"v_lshlrev_b32 v{T+4}, 16, v{T+4}")
    for m in range(8):
        p(f"v_readlane_b32 s{sPQ+m}, v{T+4}, {m}")

    for t in range(NT):
        buf = BUF + 32 * t
        for b in range(2):
            p.wait_vm(f"K{t}{b}")
            kblock(buf + 16 * b, P + 4 * b, S + 4 * b, SQ + b, T + 8 * b)
        loadV(t, buf)
        for b in range(2):
            phi(P + 4 * b, S + 4 * b, PHI + 4 * t + 2 * b, T + 16)
    for t in range(NT):
        buf = BUF + 32 * t
        p.wait_vm(f"V{t}")
        A = vr(PHI + 4 * t, 4)
        p(f"v_mfma_f32_16x16x32_bf16 {vr(Z,4)}, {A}, {vr(ONESB,4)}, {vr(Z,4)}")
        for c in range(4):
            tb = T + 8 * (c & 1)
            for i in range(4):
                r0 = buf + 4 * (2 * i) + c; r1 = buf + 4 * (2 * i + 1) + c
                p(f"v_perm_b32 v{tb+i}, v{r1}, v{r0}, s{sSelLo}")
                p(f"v_perm_b32 v{tb+4+i}, v{r1}, v{r0}, s{sSelHi}")
            e0 = 2 * c
            p(f"v_mfma_f32_16x16x32_bf16 {vr(KV+4*e0,4)}, {A}, {vr(tb,4)}, {vr(KV+4*e0,4)}")
            p(f"v_mfma_f32_16x16x32_bf16 {vr(KV+4*e0+4,4)}, {A}, {vr(tb+4,4)}, {vr(KV+4*e0+4,4)}")
    p(f"s_lshl_b32 s3, s{sWave}, 12")
    p(f"v_add_u32 v{T}, s3, v{vVoff}")
    for e in range(0, 8, 2):
        for i in range(4):
            p(f"v_permlane32_swap_b32 v{KV+4*e+i}, v{KV+4*e+4+i}")
        p(f"ds_write_b128 v{T}, {vr(KV+4*e,4)} offset:{e*512}")
    p(f"s_lshl_b32 s3, s{sWave}, 5")
    p(f"v_add_u32 v{T+1}, s3, v{vL}")
    p("s_mov_b64 exec, 0x00010001")
    p(f"ds_write_b128 v{T+1}, {vr(Z,4)} offset:32768")
    p("s_mov_b64 exec, -1")
    p("s_waitcnt lgkmcnt(0)")
    p("s_barrier")
    p(f"s_cmp_ge_u32 s{sWave}, 2")
    p("s_cbranch_scc1 L_end")
    if diag:
        p("s_memrealtime s[88:89]")
        p("s_memtime s[90:91]")
        p("s_waitcnt lgkmcnt(0)")
        p("s_mov_b64 exec, 1")
        p("s_not_b32 s92, s84")
        p(f"v_mov_b32 v{T}, s92")
        p(f"v_mov_b32 v{T+1}, 0")
        p(f"buffer_atomic_umax v{T}, v{T+1}, {sr(sDbg,4)}, 0 offen")
        p(f"v_mov_b32 v{T+2}, s88")
        p(f"buffer_atomic_umax v{T+2}, v{T+1}, {sr(sDbg,4)}, 0 offen offset:4")
        p("s_sub_u32 s92, s90, s86")
        p("s_sub_u32 s93, s88, s84")
        p(f"v_mov_b32 v{T+3}, s92")
        p(f"v_mov_b32 v{T+4}, s93")
        p(f"buffer_atomic_umax v{T+3}, v{T+1}, {sr(sDbg,4)}, 0 offen offset:12")
        p(f"buffer_atomic_umax v{T+4}, v{T+1}, {sr(sDbg,4)}, 0 offen offset:16")
        p("s_not_b32 s93, s93")
        p(f"v_mov_b32 v{T+5}, s93")
        p(f"buffer_atomic_umax v{T+5}, v{T+1}, {sr(sDbg,4)}, 0 offen offset:20")
        p(f"v_mov_b32 v{T+6}, s84")
        p(f"buffer_atomic_umax v{T+6}, v{T+1}, {sr(sDbg,4)}, 0 offen offset:24")
        p("s_mov_b64 exec, -1")
    p(f"v_lshrrev_b32 v{T}, 4, v{vL}")
    p(f"v_lshlrev_b32 v{T}, 9, v{T}")
    p(f"v_and_b32 v{T+1}, 15, v{vL}")
    p(f"v_lshl_add_u32 v{T}, v{T+1}, 4, v{T}")
    p(f"s_lshl_b32 s3, s{sWave}, 11")
    p(f"v_add_u32 v{T}, s3, v{T}")
    p(f"v_mov_b32 v{T+1}, 0")
    R = BUF
    for w in range(NW):
        p(f"ds_read_b128 {vr(R+16*w,4)}, v{T} offset:{w*4096}")
        p(f"ds_read_b128 {vr(R+16*w+4,4)}, v{T} offset:{w*4096+256}")
        p(f"ds_read_b128 {vr(R+16*w+8,4)}, v{T+1} offset:{32768+w*32}")
        p(f"ds_read_b128 {vr(R+16*w+12,4)}, v{T+1} offset:{32768+w*32+16}")
        if w == 3:
            pass
    ACC = KV
    for w in range(NW):
        rem = (NW - 1 - w) * 4
        p(f"s_waitcnt lgkmcnt({min(rem,15)})")
        for i in range(16):
            if w == 0: p(f"v_mov_b32 v{ACC+i}, v{R+i}")
            else: p(f"v_add_f32 v{ACC+i}, v{ACC+i}, v{R+16*w+i}")
    p(f"s_lshl_b32 s3, s{sQuart}, 13")
    p(f"s_lshl_b32 s51, s{sWave}, 12")
    p(f"s_add_u32 s3, s3, s51")
    p(f"v_lshlrev_b32 v{T}, 5, v{vL}")
    p(f"buffer_store_dwordx4 {vr(ACC,4)}, v{T}, {sr(sWs,4)}, s3 offen sc1")
    p(f"buffer_store_dwordx4 {vr(ACC+4,4)}, v{T}, {sr(sWs,4)}, s3 offen offset:16 sc1")
    p("s_mov_b64 exec, 1")
    p(f"buffer_store_dwordx4 {vr(ACC+8,4)}, v{T}, {sr(sWs,4)}, s3 offen offset:2048 sc1")
    p(f"buffer_store_dwordx4 {vr(ACC+12,4)}, v{T}, {sr(sWs,4)}, s3 offen offset:2064 sc1")
    p(f"s_and_b32 s82, s{sHead}, 3")
    p(f"s_lshl_b32 s82, s82, 3")
    p(f"s_lshl_b32 s3, s{sWave}, 2")
    p(f"s_add_u32 s82, s82, s3")
    p(f"s_lshl_b32 s3, 1, s82")
    p(f"v_mov_b32 v{T+1}, s3")
    p(f"s_and_b32 s3, s{sHead}, 0xfc")
    p(f"s_add_u32 s3, s3, 64")
    p(f"v_mov_b32 v{T+2}, s3")
    p("s_waitcnt vmcnt(0)")
    p(f"buffer_atomic_add v{T+1}, v{T+2}, {sr(sDbg,4)}, 0 offen sc0")
    p("s_waitcnt vmcnt(0)")
    p(f"v_readfirstlane_b32 s3, v{T+1}")
    p("s_mov_b64 exec, -1")
    p(f"s_lshr_b32 s3, s3, s82")
    p(f"s_and_b32 s3, s3, 0xf")
    p("s_cmp_lg_u32 s3, 3")
    p("s_cbranch_scc1 L_end")
    p(f"s_lshl_b32 s3, s{sWave}, 12")
    p(f"v_mov_b32 v{T+1}, 0")
    for qq in range(4):
        p(f"s_add_u32 s51, s3, {qq*8192}")
        p(f"buffer_load_dwordx4 {vr(R+16*qq,4)}, v{T}, {sr(sWs,4)}, s51 offen sc1")
        p(f"buffer_load_dwordx4 {vr(R+16*qq+4,4)}, v{T}, {sr(sWs,4)}, s51 offen offset:16 sc1")
        p(f"buffer_load_dwordx4 {vr(R+16*qq+8,4)}, v{T+1}, {sr(sWs,4)}, s51 offen offset:2048 sc1")
        p(f"buffer_load_dwordx4 {vr(R+16*qq+12,4)}, v{T+1}, {sr(sWs,4)}, s51 offen offset:2064 sc1")
    p("s_waitcnt vmcnt(0)")
    for qq in range(1, 4):
        for i in range(16):
            p(f"v_add_f32 v{R+i}, v{R+i}, v{R+16*qq+i}")
    for i in range(0, 16, 4): rnd4(R + i, T + 4)
    NUM, DEN = T + 8, T + 9
    p(f"v_mul_f32 v{NUM}, s{sPQ}, v{R}")
    p(f"v_mul_f32 v{DEN}, s{sPQ}, v{R+8}")
    for m in range(1, 8):
        p(f"v_fma_f32 v{NUM}, s{sPQ+m}, v{R+m}, v{NUM}")
        p(f"v_fma_f32 v{DEN}, s{sPQ+m}, v{R+8+m}, v{DEN}")
    p(f"v_cvt_pk_bf16_f32 v{T+4}, v{NUM}, v{DEN}")
    p(f"v_lshlrev_b32 v{NUM}, 16, v{T+4}")
    p(f"v_and_b32 v{DEN}, 0xffff0000, v{T+4}")
    p(f"v_add_f32 v{DEN}, s{sEPS}, v{DEN}")
    p(f"v_cvt_pk_bf16_f32 v{T+4}, v{DEN}, v{DEN}")
    p(f"v_lshlrev_b32 v{DEN}, 16, v{T+4}")
    a, b_, c_, d_, e_ = T + 10, T + 11, T + 12, T + 13, T + 14
    p(f"v_div_scale_f32 v{a}, s[80:81], v{DEN}, v{DEN}, v{NUM}")
    p(f"v_div_scale_f32 v{b_}, vcc, v{NUM}, v{DEN}, v{NUM}")
    p(f"v_rcp_f32 v{c_}, v{a}")
    p(f"v_fma_f32 v{d_}, -v{a}, v{c_}, 1.0")
    p(f"v_fma_f32 v{c_}, v{d_}, v{c_}, v{c_}")
    p(f"v_mul_f32 v{d_}, v{b_}, v{c_}")
    p(f"v_fma_f32 v{e_}, -v{a}, v{d_}, v{b_}")
    p(f"v_fma_f32 v{d_}, v{e_}, v{c_}, v{d_}")
    p(f"v_fma_f32 v{a}, -v{a}, v{d_}, v{b_}")
    p(f"v_div_fmas_f32 v{a}, v{a}, v{c_}, v{d_}")
    p(f"v_div_fixup_f32 v{a}, v{a}, v{DEN}, v{NUM}")
    p(f"v_cvt_pk_bf16_f32 v{a}, v{a}, v{a}")
    p(f"v_and_b32 v{b_}, 15, v{vL}")
    p(f"v_lshlrev_b32 v{b_}, 4, v{b_}")
    p(f"v_lshrrev_b32 v{c_}, 4, v{vL}")
    p(f"v_lshl_add_u32 v{b_}, v{c_}, 1, v{b_}")
    p(f"s_lshl_b32 s3, s{sWave}, 3")
    p(f"buffer_store_short v{a}, v{b_}, {sr(sOut,4)}, s3 offen")
    if diag:
        p("s_waitcnt vmcnt(0)")
        p("s_memrealtime s[88:89]")
        p("s_waitcnt lgkmcnt(0)")
        p("s_mov_b64 exec, 1")
        p(f"v_mov_b32 v{T+1}, 0")
        p(f"v_mov_b32 v{T+2}, s88")
        p(f"buffer_atomic_umax v{T+2}, v{T+1}, {sr(sDbg,4)}, 0 offen offset:8")
    p.label("L_end")
    p("s_endpgm")

    lds = NW * 4096 + NW * 32
    out = HEADER
    out += f"; @launch grid=(256,1,1) block=({NW*64},1,1) lds={lds}\n"
    out += f""".amdgcn_target "amdgcn-amd-amdhsa--gfx950"
.text
.globl {NAME}_kernel
.p2align 8
.type {NAME}_kernel,@function
{NAME}_kernel:
"""
    out += p.text()
    out += f""".section .rodata,"a"
.p2align 6
.amdhsa_kernel {NAME}_kernel
  .amdhsa_next_free_vgpr 256
  .amdhsa_next_free_sgpr 96
  .amdhsa_accum_offset 256
  .amdhsa_group_segment_fixed_size 0
  .amdhsa_kernarg_size 56
  .amdhsa_user_sgpr_count 2
  .amdhsa_user_sgpr_kernarg_segment_ptr 1
  .amdhsa_system_sgpr_workgroup_id_x 1
  .amdhsa_float_denorm_mode_32 3
.end_amdhsa_kernel
"""
    return out, p

if __name__ == "__main__":
    nt = " nt" if (len(sys.argv) > 2 and sys.argv[2] == "nt") else ""
    txt, p = gen(nt=nt, diag=("diag" in sys.argv))
    open(sys.argv[1], "w").write(txt)
    print("nops inserted:", p.nops_inserted, "lines", len(p.lines))
```

```python
import struct, sys, math
from asmdsl import Prog

def f32bits(x):
    return struct.unpack("<I", struct.pack("<f", x))[0]
def f32(x):
    return struct.unpack("<f", struct.pack("<f", x))[0]

NAME = "standalone__linear_kernel_rfa__decode"
HEADER = open("cdna_kernels/%s.s.ref" % NAME).read().split("; Override launch")[0]

def gen(nt="", NW=8, diag=False):
    NT = 1024 // NW // 32
    assert NT == 4
    p = Prog()
    LOG2E = 1.4426950408889634
    L1b = f32bits(LOG2E) & 0xFFFFFF00
    L1 = struct.unpack("<f", struct.pack("<I", L1b))[0]
    L2b = f32bits(LOG2E - L1)
    SCALE = f32bits(128.0 ** -0.25)
    CM = f32bits(8.0 ** -0.5)
    EPS = f32bits(1e-6)
    vL, vKoff, vVoff, vM, vOne = 1, 2, 3, 4, 5
    vClampLo = 6
    ONESB = 8
    W = 12
    KV = 28
    Z = 60
    PHI = 64
    P = 80
    S = 88
    SQ = 96
    T = 98
    BUF = 128
    sK, sV, sOm, sQ, sWs, sOut, sDbg = 20, 24, 28, 32, 36, 40, 44
    sWave, sHead, sQuart = 48, 49, 50
    sScale, sSelLo, sSelHi, sL1, sL2, sCM, sEPS, sClampHi = 52, 54, 55, 56, 57, 58, 59, 61
    sTB = 64
    sPQ = 72

    def vr(a, n): return f"v[{a}:{a+n-1}]"
    def sr(a, n): return f"s[{a}:{a+n-1}]"

    p("s_cmp_ge_u32 s2, 256")
    p("s_cbranch_scc1 L_end")
    p("s_load_dwordx8 s[4:11], s[0:1], 0")
    p("s_load_dwordx4 s[12:15], s[0:1], 32")
    p("s_load_dwordx2 s[16:17], s[0:1], 48")
    if diag:
        p("s_memrealtime s[84:85]")
        p("s_memtime s[86:87]")
    p(f"v_and_b32 v{vL}, 63, v0")
    p(f"v_lshrrev_b32 v{vM}, 6, v0")
    p(f"v_readfirstlane_b32 s{sWave}, v{vM}")
    p(f"v_and_b32 v{T}, 3, v{vL}")
    p(f"v_lshlrev_b32 v{T}, 11, v{T}")
    p(f"v_bfe_u32 v{T+1}, v{vL}, 2, 2")
    p(f"v_lshlrev_b32 v{T+1}, 8, v{T+1}")
    p(f"v_lshrrev_b32 v{T+2}, 4, v{vL}")
    p(f"v_lshlrev_b32 v{T+2}, 4, v{T+2}")
    p(f"v_add3_u32 v{vKoff}, v{T}, v{T+1}, v{T+2}")
    p(f"v_lshlrev_b32 v{vVoff}, 4, v{vL}")
    p(f"v_and_b32 v{T+3}, 15, v{vL}")
    p(f"v_lshl_add_u32 v{T+3}, v{T+3}, 8, v{T+2}")
    p(f"s_lshr_b32 s{sHead}, s2, 2")
    p(f"s_and_b32 s{sQuart}, s2, 3")
    p(f"s_lshl_b32 s3, s{sWave}, 13")
    for t in range(NT):
        p(f"s_add_u32 s{sTB+t}, s3, {t*NW*8192}")
        p(f"s_add_u32 s{sTB+4+t}, s3, {t*NW*8192+4096}")
    p(f"s_lshl_b32 s3, s2, 18")
    p("s_waitcnt lgkmcnt(0)")
    p(f"s_add_u32 s{sK}, s6, s3"); p(f"s_addc_u32 s{sK+1}, s7, 0")
    p(f"s_mov_b32 s{sK+2}, 0x40000"); p(f"s_mov_b32 s{sK+3}, 0x20000")
    p(f"s_add_u32 s{sV}, s8, s3"); p(f"s_addc_u32 s{sV+1}, s9, 0")
    p(f"s_mov_b32 s{sV+2}, 0x40000"); p(f"s_mov_b32 s{sV+3}, 0x20000")
    p(f"s_mov_b32 s{sOm}, s10"); p(f"s_mov_b32 s{sOm+1}, s11")
    p(f"s_mov_b32 s{sOm+2}, 2048"); p(f"s_mov_b32 s{sOm+3}, 0x20000")
    p(f"s_lshl_b32 s3, s{sHead}, 8")
    p(f"s_add_u32 s{sQ}, s4, s3"); p(f"s_addc_u32 s{sQ+1}, s5, 0")
    p(f"s_mov_b32 s{sQ+2}, 256"); p(f"s_mov_b32 s{sQ+3}, 0x20000")
    for kk in range(4):
        p(f"buffer_load_dwordx4 {vr(W+4*kk,4)}, v{T+3}, {sr(sOm,4)}, 0 offen offset:{kk*64}", tag="om")
    QB = T + 8
    for kk in range(4):
        p(f"buffer_load_dwordx4 {vr(QB+4*kk,4)}, v{T+2}, {sr(sQ,4)}, 0 offen offset:{kk*64}", tag="q")
    def loadK(t, buf):
        for b in range(2):
            for kk in range(4):
                p(f"buffer_load_dwordx4 {vr(buf+16*b+4*kk,4)}, v{vKoff}, {sr(sK,4)}, s{sTB+t} offen offset:{b*1024+kk*64}{nt}", tag=f"K{t}{b}")
    def loadV(t, buf):
        for r in range(8):
            b, rho = r >> 2, r & 3
            sg = 2 * rho + b
            so = sTB + t if sg < 4 else sTB + 4 + t
            p(f"buffer_load_dwordx4 {vr(buf+4*r,4)}, v{vVoff}, {sr(sV,4)}, s{so} offen offset:{(sg&3)*1024}{nt}", tag=f"V{t}")
    for t in range(NT):
        loadK(t, BUF + 32 * t)
    p(f"s_add_u32 s{sOut}, s12, s3"); p(f"s_addc_u32 s{sOut+1}, s13, 0")
    p(f"s_mov_b32 s{sOut+2}, 256"); p(f"s_mov_b32 s{sOut+3}, 0x20000")
    p(f"s_mov_b32 s{sDbg}, s14"); p(f"s_mov_b32 s{sDbg+1}, s15")
    p(f"s_mov_b32 s{sDbg+2}, 256"); p(f"s_mov_b32 s{sDbg+3}, 0x20000")
    p(f"s_lshl_b32 s3, s{sHead}, 15")
    p(f"s_add_u32 s{sWs}, s16, s3"); p(f"s_addc_u32 s{sWs+1}, s17, 0")
    p(f"s_mov_b32 s{sWs+2}, 0x8000"); p(f"s_mov_b32 s{sWs+3}, 0x20000")
    p(f"s_mov_b32 s{sScale}, {SCALE:#x}"); p(f"s_mov_b32 s{sScale+1}, {SCALE:#x}")
    p(f"s_mov_b32 s{sSelLo}, 0x05040100"); p(f"s_mov_b32 s{sSelHi}, 0x07060302")
    p(f"s_mov_b32 s{sL1}, {L1b:#x}"); p(f"s_mov_b32 s{sL2}, {L2b:#x}")
    p(f"s_mov_b32 s{sCM}, {CM:#x}"); p(f"s_mov_b32 s{sEPS}, {EPS:#x}")
    p(f"s_mov_b32 s{sClampHi}, {f32bits(200.0):#x}")
    p(f"v_mov_b32 v{vClampLo}, {f32bits(-200.0):#x}")
    p(f"v_mov_b32 v{vOne}, 1.0")
    for i in range(4): p(f"v_mov_b32 v{ONESB+i}, 0x3f803f80")
    for i in range(36): p(f"v_mov_b32 v{KV+i}, 0")

    def kblock(X, Pd, Sd, sq, tmp):
        for kk in range(4):
            for c in range(4):
                x = X + 4 * kk + c
                p(f"v_lshlrev_b32 v{tmp+2*c}, 16, v{x}")
                p(f"v_and_b32 v{tmp+2*c+1}, 0xffff0000, v{x}")
            for c in range(4):
                p(f"v_pk_mul_f32 {vr(tmp+2*c,2)}, {vr(tmp+2*c,2)}, {sr(sScale,2)}")
            for c in range(4):
                x = X + 4 * kk + c
                p(f"v_cvt_pk_bf16_f32 v{x}, v{tmp+2*c}, v{tmp+2*c+1}")
            for c in range(4):
                x = X + 4 * kk + c
                src2 = "0" if (kk == 0 and c == 0) else f"v{sq}"
                p(f"v_dot2_f32_bf16 v{sq}, v{x}, v{x}, {src2}")
            cc = "0" if kk == 0 else vr(Pd, 4)
            p(f"v_mfma_f32_16x16x32_bf16 {vr(Pd,4)}, {vr(X+4*kk,4)}, {vr(W+4*kk,4)}, {cc}")
        p(f"v_mfma_f32_16x16x4_f32 {vr(Sd,4)}, v{sq}, v{vOne}, 0")

    def rnd4(a, tmp):
        p(f"v_cvt_pk_bf16_f32 v{tmp}, v{a}, v{a+1}")
        p(f"v_cvt_pk_bf16_f32 v{tmp+1}, v{a+2}, v{a+3}")
        p(f"v_lshlrev_b32 v{a}, 16, v{tmp}")
        p(f"v_and_b32 v{a+1}, 0xffff0000, v{tmp}")
        p(f"v_lshlrev_b32 v{a+2}, 16, v{tmp+1}")
        p(f"v_and_b32 v{a+3}, 0xffff0000, v{tmp+1}")

    def phi(Pd, Sd, out2, tmp):
        rnd4(Pd, tmp); rnd4(Sd, tmp + 2)
        for i in range(4): p(f"v_fma_f32 v{Pd+i}, v{Sd+i}, -0.5, v{Pd+i}")
        rnd4(Pd, tmp)
        for i in range(4): p(f"v_med3_f32 v{Pd+i}, v{Pd+i}, v{vClampLo}, s{sClampHi}")
        for i in range(4): p(f"v_mul_f32 v{Sd+i}, s{sL1}, v{Pd+i}")
        for i in range(4): p(f"v_rndne_f32 v{tmp+i}, v{Sd+i}")
        for i in range(4): p(f"v_sub_f32 v{Sd+i}, v{Sd+i}, v{tmp+i}")
        for i in range(4): p(f"v_fma_f32 v{Sd+i}, v{Pd+i}, s{sL2}, v{Sd+i}")
        for i in range(4): p(f"v_cvt_i32_f32 v{tmp+i}, v{tmp+i}")
        for i in range(4): p(f"v_exp_f32 v{Sd+i}, v{Sd+i}")
        for i in range(4): p(f"v_ldexp_f32 v{Pd+i}, v{Sd+i}, v{tmp+i}")
        rnd4(Pd, tmp)
        for i in range(4): p(f"v_mul_f32 v{Pd+i}, s{sCM}, v{Pd+i}")
        rnd4(Pd, tmp)
        for i in range(4): p(f"v_add_f32 v{Pd+i}, s{sEPS}, v{Pd+i}")
        p(f"v_cvt_pk_bf16_f32 v{out2}, v{Pd}, v{Pd+1}")
        p(f"v_cvt_pk_bf16_f32 v{out2+1}, v{Pd+2}, v{Pd+3}")

    p.wait_vm("q")
    kblock(QB, P, S, SQ, T)
    phi(P, S, T + 4, T)
    p(f"v_lshlrev_b32 v{T+4}, 16, v{T+4}")
    for m in range(8):
        p(f"v_readlane_b32 s{sPQ+m}, v{T+4}, {m}")

    for t in range(NT):
        buf = BUF + 32 * t
        for b in range(2):
            p.wait_vm(f"K{t}{b}")
            kblock(buf + 16 * b, P + 4 * b, S + 4 * b, SQ + b, T + 8 * b)
        loadV(t, buf)
        for b in range(2):
            phi(P + 4 * b, S + 4 * b, PHI + 4 * t + 2 * b, T + 16)
    for t in range(NT):
        buf = BUF + 32 * t
        p.wait_vm(f"V{t}")
        A = vr(PHI + 4 * t, 4)
        p(f"v_mfma_f32_16x16x32_bf16 {vr(Z,4)}, {A}, {vr(ONESB,4)}, {vr(Z,4)}")
        for c in range(4):
            tb = T + 8 * (c & 1)
            for i in range(4):
                r0 = buf + 4 * (2 * i) + c; r1 = buf + 4 * (2 * i + 1) + c
                p(f"v_perm_b32 v{tb+i}, v{r1}, v{r0}, s{sSelLo}")
                p(f"v_perm_b32 v{tb+4+i}, v{r1}, v{r0}, s{sSelHi}")
            e0 = 2 * c
            p(f"v_mfma_f32_16x16x32_bf16 {vr(KV+4*e0,4)}, {A}, {vr(tb,4)}, {vr(KV+4*e0,4)}")
            p(f"v_mfma_f32_16x16x32_bf16 {vr(KV+4*e0+4,4)}, {A}, {vr(tb+4,4)}, {vr(KV+4*e0+4,4)}")
    p(f"s_lshl_b32 s3, s{sWave}, 12")
    p(f"v_add_u32 v{T}, s3, v{vVoff}")
    for e in range(0, 8, 2):
        for i in range(4):
            p(f"v_permlane32_swap_b32 v{KV+4*e+i}, v{KV+4*e+4+i}")
        p(f"ds_write_b128 v{T}, {vr(KV+4*e,4)} offset:{e*512}")
    p(f"s_lshl_b32 s3, s{sWave}, 5")
    p(f"v_add_u32 v{T+1}, s3, v{vL}")
    p("s_mov_b64 exec, 0x00010001")
    p(f"ds_write_b128 v{T+1}, {vr(Z,4)} offset:32768")
    p("s_mov_b64 exec, -1")
    p("s_waitcnt lgkmcnt(0)")
    p("s_barrier")
    p(f"s_cmp_ge_u32 s{sWave}, 2")
    p("s_cbranch_scc1 L_end")
    if diag:
        p("s_memrealtime s[88:89]")
        p("s_memtime s[90:91]")
        p("s_lshl_b32 s92, s2, 6")
        p(f"s_lshl_b32 s93, s{sWave}, 5")
        p("s_add_u32 s92, s92, s93")
        p("s_add_u32 s92, s92, 0x1000000")
        p("s_add_u32 s92, s16, s92")
        p("s_addc_u32 s93, s17, 0")
        p("s_mov_b32 s94, 32")
        p("s_mov_b32 s95, 0x20000")
        p("s_waitcnt lgkmcnt(0)")
        p("s_mov_b64 exec, 1")
        p("s_sub_u32 s90, s90, s86")
        p(f"v_mov_b32 v{T}, s84")
        p(f"v_mov_b32 v{T+1}, s88")
        p(f"v_mov_b32 v{T+2}, s90")
        p(f"v_mov_b32 v{T+3}, 0")
        p(f"buffer_store_dwordx4 {vr(T,4)}, v{T+3}, s[92:95], 0 offen")
        p("s_and_b32 s90, s2, 63")
        p(f"s_or_b32 s90, s90, s{sWave}")
        p("s_cmp_lg_u32 s90, 0")
        p("s_cbranch_scc1 L_nodbg")
        p("s_lshr_b32 s90, s2, 2")
        p(f"buffer_store_dwordx3 {vr(T,3)}, v{T+3}, {sr(sDbg,4)}, s90 offen")
        p.label("L_nodbg")
        p("s_mov_b64 exec, -1")
    p(f"v_lshrrev_b32 v{T}, 4, v{vL}")
    p(f"v_lshlrev_b32 v{T}, 9, v{T}")
    p(f"v_and_b32 v{T+1}, 15, v{vL}")
    p(f"v_lshl_add_u32 v{T}, v{T+1}, 4, v{T}")
    p(f"s_lshl_b32 s3, s{sWave}, 11")
    p(f"v_add_u32 v{T}, s3, v{T}")
    p(f"v_mov_b32 v{T+1}, 0")
    R = BUF
    for w in range(NW):
        p(f"ds_read_b128 {vr(R+16*w,4)}, v{T} offset:{w*4096}")
        p(f"ds_read_b128 {vr(R+16*w+4,4)}, v{T} offset:{w*4096+256}")
        p(f"ds_read_b128 {vr(R+16*w+8,4)}, v{T+1} offset:{32768+w*32}")
        p(f"ds_read_b128 {vr(R+16*w+12,4)}, v{T+1} offset:{32768+w*32+16}")
        if w == 3:
            pass
    ACC = KV
    for w in range(NW):
        rem = (NW - 1 - w) * 4
        p(f"s_waitcnt lgkmcnt({min(rem,15)})")
        for i in range(16):
            if w == 0: p(f"v_mov_b32 v{ACC+i}, v{R+i}")
            else: p(f"v_add_f32 v{ACC+i}, v{ACC+i}, v{R+16*w+i}")
    p(f"s_lshl_b32 s3, s{sQuart}, 13")
    p(f"s_lshl_b32 s51, s{sWave}, 12")
    p(f"s_add_u32 s3, s3, s51")
    p(f"v_lshlrev_b32 v{T}, 5, v{vL}")
    p(f"buffer_store_dwordx4 {vr(ACC,4)}, v{T}, {sr(sWs,4)}, s3 offen sc1")
    p(f"buffer_store_dwordx4 {vr(ACC+4,4)}, v{T}, {sr(sWs,4)}, s3 offen offset:16 sc1")
    p("s_mov_b64 exec, 1")
    p(f"buffer_store_dwordx4 {vr(ACC+8,4)}, v{T}, {sr(sWs,4)}, s3 offen offset:2048 sc1")
    p(f"buffer_store_dwordx4 {vr(ACC+12,4)}, v{T}, {sr(sWs,4)}, s3 offen offset:2064 sc1")
    p(f"s_and_b32 s82, s{sHead}, 3")
    p(f"s_lshl_b32 s82, s82, 3")
    p(f"s_lshl_b32 s3, s{sWave}, 2")
    p(f"s_add_u32 s82, s82, s3")
    p(f"s_lshl_b32 s3, 1, s82")
    p(f"v_mov_b32 v{T+1}, s3")
    p(f"s_and_b32 s3, s{sHead}, 0xfc")
    p(f"s_add_u32 s3, s3, 64")
    p(f"v_mov_b32 v{T+2}, s3")
    p("s_waitcnt vmcnt(0)")
    p(f"buffer_atomic_add v{T+1}, v{T+2}, {sr(sDbg,4)}, 0 offen sc0")
    p("s_waitcnt vmcnt(0)")
    p(f"v_readfirstlane_b32 s3, v{T+1}")
    p("s_mov_b64 exec, -1")
    p(f"s_lshr_b32 s3, s3, s82")
    p(f"s_and_b32 s3, s3, 0xf")
    p("s_cmp_lg_u32 s3, 3")
    p("s_cbranch_scc1 L_end")
    p(f"s_lshl_b32 s3, s{sWave}, 12")
    p(f"v_mov_b32 v{T+1}, 0")
    for qq in range(4):
        p(f"s_add_u32 s51, s3, {qq*8192}")
        p(f"buffer_load_dwordx4 {vr(R+16*qq,4)}, v{T}, {sr(sWs,4)}, s51 offen sc1")
        p(f"buffer_load_dwordx4 {vr(R+16*qq+4,4)}, v{T}, {sr(sWs,4)}, s51 offen offset:16 sc1")
        p(f"buffer_load_dwordx4 {vr(R+16*qq+8,4)}, v{T+1}, {sr(sWs,4)}, s51 offen offset:2048 sc1")
        p(f"buffer_load_dwordx4 {vr(R+16*qq+12,4)}, v{T+1}, {sr(sWs,4)}, s51 offen offset:2064 sc1")
    p("s_waitcnt vmcnt(0)")
    for qq in range(1, 4):
        for i in range(16):
            p(f"v_add_f32 v{R+i}, v{R+i}, v{R+16*qq+i}")
    for i in range(0, 16, 4): rnd4(R + i, T + 4)
    NUM, DEN = T + 8, T + 9
    p(f"v_mul_f32 v{NUM}, s{sPQ}, v{R}")
    p(f"v_mul_f32 v{DEN}, s{sPQ}, v{R+8}")
    for m in range(1, 8):
        p(f"v_fma_f32 v{NUM}, s{sPQ+m}, v{R+m}, v{NUM}")
        p(f"v_fma_f32 v{DEN}, s{sPQ+m}, v{R+8+m}, v{DEN}")
    p(f"v_cvt_pk_bf16_f32 v{T+4}, v{NUM}, v{DEN}")
    p(f"v_lshlrev_b32 v{NUM}, 16, v{T+4}")
    p(f"v_and_b32 v{DEN}, 0xffff0000, v{T+4}")
    p(f"v_add_f32 v{DEN}, s{sEPS}, v{DEN}")
    p(f"v_cvt_pk_bf16_f32 v{T+4}, v{DEN}, v{DEN}")
    p(f"v_lshlrev_b32 v{DEN}, 16, v{T+4}")
    a, b_, c_, d_, e_ = T + 10, T + 11, T + 12, T + 13, T + 14
    p(f"v_div_scale_f32 v{a}, s[80:81], v{DEN}, v{DEN}, v{NUM}")
    p(f"v_div_scale_f32 v{b_}, vcc, v{NUM}, v{DEN}, v{NUM}")
    p(f"v_rcp_f32 v{c_}, v{a}")
    p(f"v_fma_f32 v{d_}, -v{a}, v{c_}, 1.0")
    p(f"v_fma_f32 v{c_}, v{d_}, v{c_}, v{c_}")
    p(f"v_mul_f32 v{d_}, v{b_}, v{c_}")
    p(f"v_fma_f32 v{e_}, -v{a}, v{d_}, v{b_}")
    p(f"v_fma_f32 v{d_}, v{e_}, v{c_}, v{d_}")
    p(f"v_fma_f32 v{a}, -v{a}, v{d_}, v{b_}")
    p(f"v_div_fmas_f32 v{a}, v{a}, v{c_}, v{d_}")
    p(f"v_div_fixup_f32 v{a}, v{a}, v{DEN}, v{NUM}")
    p(f"v_cvt_pk_bf16_f32 v{a}, v{a}, v{a}")
    p(f"v_and_b32 v{b_}, 15, v{vL}")
    p(f"v_lshlrev_b32 v{b_}, 4, v{b_}")
    p(f"v_lshrrev_b32 v{c_}, 4, v{vL}")
    p(f"v_lshl_add_u32 v{b_}, v{c_}, 1, v{b_}")
    p(f"s_lshl_b32 s3, s{sWave}, 3")
    p(f"buffer_store_short v{a}, v{b_}, {sr(sOut,4)}, s3 offen")
    if diag:
        p("s_waitcnt vmcnt(0)")
        p("s_memrealtime s[88:89]")
        p("s_waitcnt lgkmcnt(0)")
        p("s_mov_b64 exec, 1")
        p(f"v_mov_b32 v{T+1}, 0")
        p(f"v_mov_b32 v{T+2}, s88")
        p(f"buffer_store_dword v{T+2}, v{T+1}, s[92:95], 0 offen offset:12")
        p(f"s_and_b32 s90, s{sHead}, 15")
        p(f"s_or_b32 s90, s90, s{sWave}")
        p("s_cmp_lg_u32 s90, 0")
        p("s_cbranch_scc1 L_end")
        p(f"s_mov_b32 s90, s{sHead}")
        p(f"buffer_store_dword v{T+2}, v{T+1}, {sr(sDbg,4)}, s90 offen offset:12")
    p.label("L_end")
    p("s_endpgm")

    lds = NW * 4096 + NW * 32
    out = HEADER
    out += f"; @launch grid=(256,1,1) block=({NW*64},1,1) lds={lds}\n"
    out += f""".amdgcn_target "amdgcn-amd-amdhsa--gfx950"
.text
.globl {NAME}_kernel
.p2align 8
.type {NAME}_kernel,@function
{NAME}_kernel:
"""
    out += p.text()
    out += f""".section .rodata,"a"
.p2align 6
.amdhsa_kernel {NAME}_kernel
  .amdhsa_next_free_vgpr 256
  .amdhsa_next_free_sgpr 96
  .amdhsa_accum_offset 256
  .amdhsa_group_segment_fixed_size 0
  .amdhsa_kernarg_size 56
  .amdhsa_user_sgpr_count 2
  .amdhsa_user_sgpr_kernarg_segment_ptr 1
  .amdhsa_system_sgpr_workgroup_id_x 1
  .amdhsa_float_denorm_mode_32 3
.end_amdhsa_kernel
"""
    return out, p

if __name__ == "__main__":
    nt = " nt" if (len(sys.argv) > 2 and sys.argv[2] == "nt") else ""
    txt, p = gen(nt=nt, diag=("diag" in sys.argv))
    open(sys.argv[1], "w").write(txt)
    print("nops inserted:", p.nops_inserted, "lines", len(p.lines))
```

```python
import struct, sys, math
from asmdsl import Prog

def f32bits(x):
    return struct.unpack("<I", struct.pack("<f", x))[0]

NAME = "standalone__linear_kernel_rfa__decode"
HEADER = open("cdna_kernels/%s.s.ref" % NAME).read().split("; Override launch")[0]

def gen(nt=" nt", NW=8, diag=False):
    NT = 1024 // NW // 32
    assert NT == 4
    p = Prog()
    LOG2E = 1.4426950408889634
    L1b = f32bits(LOG2E) & 0xFFFFFF00
    L1 = struct.unpack("<f", struct.pack("<I", L1b))[0]
    L2b = f32bits(LOG2E - L1)
    SCALE = f32bits(128.0 ** -0.25)
    CM = f32bits(8.0 ** -0.5)
    EPS = f32bits(1e-6)
    vL, vKoff, vVoff, vM, vOne, vClampLo, vFlag = 1, 2, 3, 4, 5, 6, 7
    ONESB = 8
    W = 12
    KV = 20
    Z = 52
    PHI = 56
    C = 72
    S = 88
    SQ = 96
    T = 100
    BUF = 128
    sK, sV, sOm, sQ, sWs, sOut, sDbg = 20, 24, 28, 32, 36, 40, 44
    sWave, sHead, sQuart = 48, 49, 50
    sScale, sSelLo, sSelHi, sL1, sL2, sCM, sEPS, sClampHi = 52, 54, 55, 56, 57, 58, 59, 61
    sTB = 64
    sPQ = 72
    sSlot, sRound, sFl = 82, 83, 62

    def vr(a, n): return f"v[{a}:{a+n-1}]"
    def sr(a, n): return f"s[{a}:{a+n-1}]"

    p("s_cmp_ge_u32 s2, 256")
    p("s_cbranch_scc1 L_end")
    p("s_load_dwordx8 s[4:11], s[0:1], 0")
    p("s_load_dwordx4 s[12:15], s[0:1], 32")
    p("s_load_dwordx2 s[16:17], s[0:1], 48")
    if diag:
        p("s_memrealtime s[84:85]")
        p("s_memtime s[86:87]")
    p(f"v_and_b32 v{vL}, 63, v0")
    p(f"v_lshrrev_b32 v{vM}, 6, v0")
    p(f"v_readfirstlane_b32 s{sWave}, v{vM}")
    p(f"v_bfe_u32 v{T+3}, v{vL}, 3, 1")
    p(f"v_lshlrev_b32 v{T+3}, 6, v{T+3}")
    p(f"v_lshrrev_b32 v{T+2}, 4, v{vL}")
    p(f"v_lshl_add_u32 v{T+2}, v{T+2}, 4, v{T+3}")
    p(f"v_and_b32 v{T}, 3, v{vL}")
    p(f"v_lshlrev_b32 v{T}, 11, v{T}")
    p(f"v_bfe_u32 v{T+1}, v{vL}, 2, 1")
    p(f"v_lshlrev_b32 v{T+1}, 8, v{T+1}")
    p(f"v_add3_u32 v{vKoff}, v{T}, v{T+1}, v{T+2}")
    p(f"v_lshlrev_b32 v{vVoff}, 4, v{vL}")
    p(f"v_and_b32 v{T+3}, 7, v{vL}")
    p(f"v_lshl_add_u32 v{T+3}, v{T+3}, 8, v{T+2}")
    p(f"s_lshr_b32 s{sHead}, s2, 2")
    p(f"s_and_b32 s{sQuart}, s2, 3")
    p(f"s_lshl_b32 s3, s{sWave}, 13")
    for t in range(NT):
        p(f"s_add_u32 s{sTB+t}, s3, {t*NW*8192}")
        p(f"s_add_u32 s{sTB+4+t}, s3, {t*NW*8192+4096}")
    p(f"s_lshl_b32 s3, s2, 18")
    p("s_waitcnt lgkmcnt(0)")
    p(f"s_add_u32 s{sK}, s6, s3"); p(f"s_addc_u32 s{sK+1}, s7, 0")
    p(f"s_mov_b32 s{sK+2}, 0x40000"); p(f"s_mov_b32 s{sK+3}, 0x20000")
    def loadK(t, buf):
        for r in range(8):
            b, o, h = r >> 2, (r >> 1) & 1, r & 1
            p(f"buffer_load_dwordx4 {vr(buf+4*r,4)}, v{vKoff}, {sr(sK,4)}, s{sTB+t} offen offset:{b*1024+o*512+h*128}{nt}", tag=f"K{t}{b}")
    def loadV(t, buf):
        for r in range(8):
            b, rho = r >> 2, r & 3
            sg = 2 * rho + b
            so = sTB + t if sg < 4 else sTB + 4 + t
            p(f"buffer_load_dwordx4 {vr(buf+4*r,4)}, v{vVoff}, {sr(sV,4)}, s{so} offen offset:{(sg&3)*1024}{nt}", tag=f"V{t}")
    loadK(0, BUF)
    p(f"s_add_u32 s{sV}, s8, s3"); p(f"s_addc_u32 s{sV+1}, s9, 0")
    p(f"s_mov_b32 s{sV+2}, 0x40000"); p(f"s_mov_b32 s{sV+3}, 0x20000")
    p(f"s_mov_b32 s{sOm}, s10"); p(f"s_mov_b32 s{sOm+1}, s11")
    p(f"s_mov_b32 s{sOm+2}, 2048"); p(f"s_mov_b32 s{sOm+3}, 0x20000")
    p(f"s_lshl_b32 s3, s{sHead}, 8")
    p(f"s_add_u32 s{sQ}, s4, s3"); p(f"s_addc_u32 s{sQ+1}, s5, 0")
    p(f"s_mov_b32 s{sQ+2}, 256"); p(f"s_mov_b32 s{sQ+3}, 0x20000")
    p(f"s_add_u32 s{sOut}, s12, s3"); p(f"s_addc_u32 s{sOut+1}, s13, 0")
    p(f"s_mov_b32 s{sOut+2}, 256"); p(f"s_mov_b32 s{sOut+3}, 0x20000")
    p(f"s_mov_b32 s{sDbg}, s14"); p(f"s_mov_b32 s{sDbg+1}, s15")
    p(f"s_mov_b32 s{sDbg+2}, 256"); p(f"s_mov_b32 s{sDbg+3}, 0x20000")
    p(f"s_lshl_b32 s3, s{sHead}, 15")
    p(f"s_add_u32 s{sWs}, s16, s3"); p(f"s_addc_u32 s{sWs+1}, s17, 0")
    p(f"s_mov_b32 s{sWs+2}, 0x8000"); p(f"s_mov_b32 s{sWs+3}, 0x20000")
    p(f"s_lshl_b32 s{sSlot}, s{sQuart}, 13")
    p(f"s_cmp_lg_u32 s{sWave}, 0")
    p("s_cbranch_scc1 L_noinv")
    for i in range(4): p(f"v_mov_b32 v{T+4+i}, -1")
    for hh in range(2):
        for c in range(3):
            p(f"buffer_store_dwordx4 {vr(T+4,4)}, v{vVoff}, {sr(sWs,4)}, s{sSlot} offen offset:{c*1024} sc1" if hh == 0 else
              f"buffer_store_dwordx4 {vr(T+4,4)}, v{vVoff}, {sr(sWs,4)}, s51 offen offset:{c*1024} sc1")
        if hh == 0: p(f"s_add_u32 s51, s{sSlot}, 4096")
    p.label("L_noinv")
    p.nvm -= 6; p.vm = p.vm[:-6]
    for h in range(2):
        p(f"buffer_load_dwordx4 {vr(W+4*h,4)}, v{T+3}, {sr(sOm,4)}, 0 offen offset:{h*128}", tag="om")
    QB = T + 8
    for r in range(4):
        p(f"buffer_load_dwordx4 {vr(QB+4*r,4)}, v{T+2}, {sr(sQ,4)}, 0 offen offset:{(r&1)*128}", tag="q")
    for t in range(1, NT):
        loadK(t, BUF + 32 * t)
    p(f"s_mov_b32 s{sScale}, {SCALE:#x}"); p(f"s_mov_b32 s{sScale+1}, {SCALE:#x}")
    p(f"s_mov_b32 s{sSelLo}, 0x05040100"); p(f"s_mov_b32 s{sSelHi}, 0x07060302")
    p(f"s_mov_b32 s{sL1}, {L1b:#x}"); p(f"s_mov_b32 s{sL2}, {L2b:#x}")
    p(f"s_mov_b32 s{sCM}, {CM:#x}"); p(f"s_mov_b32 s{sEPS}, {EPS:#x}")
    p(f"s_mov_b32 s{sClampHi}, {f32bits(200.0):#x}")
    p(f"v_mov_b32 v{vClampLo}, {f32bits(-200.0):#x}")
    p(f"v_mov_b32 v{vOne}, 1.0")
    for i in range(4): p(f"v_mov_b32 v{ONESB+i}, 0x3f803f80")
    for i in range(36): p(f"v_mov_b32 v{KV+i}, 0")

    def kblock(X, Cd, Sd, sq, tmp):
        for o in range(2):
            for h in range(2):
                x0 = X + 8 * o + 4 * h
                for c in range(4):
                    p(f"v_lshlrev_b32 v{tmp+2*c}, 16, v{x0+c}")
                    p(f"v_and_b32 v{tmp+2*c+1}, 0xffff0000, v{x0+c}")
                for c in range(4):
                    p(f"v_pk_mul_f32 {vr(tmp+2*c,2)}, {vr(tmp+2*c,2)}, {sr(sScale,2)}")
                for c in range(4):
                    p(f"v_cvt_pk_bf16_f32 v{x0+c}, v{tmp+2*c}, v{tmp+2*c+1}")
                for c in range(4):
                    src2 = "0" if (h == 0 and c == 0) else f"v{sq+o}"
                    p(f"v_dot2_f32_bf16 v{sq+o}, v{x0+c}, v{x0+c}, {src2}")
                cc = "0" if h == 0 else vr(Cd + 4 * o, 4)
                p(f"v_mfma_f32_16x16x32_bf16 {vr(Cd+4*o,4)}, {vr(x0,4)}, {vr(W+4*h,4)}, {cc}")
        p(f"v_add_f32_dpp v{sq}, v{sq}, v{sq} row_ror:8 row_mask:0xf bank_mask:0xf")
        p(f"v_add_f32_dpp v{sq+1}, v{sq+1}, v{sq+1} row_ror:8 row_mask:0xf bank_mask:0xf")
        p(f"v_mov_b32_dpp v{sq}, v{sq+1} quad_perm:[0,1,2,3] row_mask:0xf bank_mask:0xc")
        p(f"v_mfma_f32_16x16x4_f32 {vr(Sd,4)}, v{sq}, v{vOne}, 0")
    def kcombine(Cd):
        for i in range(4):
            p(f"v_permlane32_swap_b32 v{Cd+i}, v{Cd+4+i}")
        for i in range(4):
            p(f"v_add_f32_dpp v{Cd+i}, v{Cd+4+i}, v{Cd+i} row_ror:8 row_mask:0xf bank_mask:0xf")

    def rnd4(a, tmp):
        p(f"v_cvt_pk_bf16_f32 v{tmp}, v{a}, v{a+1}")
        p(f"v_cvt_pk_bf16_f32 v{tmp+1}, v{a+2}, v{a+3}")
        p(f"v_lshlrev_b32 v{a}, 16, v{tmp}")
        p(f"v_and_b32 v{a+1}, 0xffff0000, v{tmp}")
        p(f"v_lshlrev_b32 v{a+2}, 16, v{tmp+1}")
        p(f"v_and_b32 v{a+3}, 0xffff0000, v{tmp+1}")

    def phi(Pd, Sd, out2, tmp):
        rnd4(Pd, tmp); rnd4(Sd, tmp + 2)
        for i in range(4): p(f"v_fma_f32 v{Pd+i}, v{Sd+i}, -0.5, v{Pd+i}")
        rnd4(Pd, tmp)
        for i in range(4): p(f"v_med3_f32 v{Pd+i}, v{Pd+i}, v{vClampLo}, s{sClampHi}")
        for i in range(4): p(f"v_mul_f32 v{Sd+i}, s{sL1}, v{Pd+i}")
        for i in range(4): p(f"v_rndne_f32 v{tmp+i}, v{Sd+i}")
        for i in range(4): p(f"v_sub_f32 v{Sd+i}, v{Sd+i}, v{tmp+i}")
        for i in range(4): p(f"v_fma_f32 v{Sd+i}, v{Pd+i}, s{sL2}, v{Sd+i}")
        for i in range(4): p(f"v_cvt_i32_f32 v{tmp+i}, v{tmp+i}")
        for i in range(4): p(f"v_exp_f32 v{Sd+i}, v{Sd+i}")
        for i in range(4): p(f"v_ldexp_f32 v{Pd+i}, v{Sd+i}, v{tmp+i}")
        rnd4(Pd, tmp)
        for i in range(4): p(f"v_mul_f32 v{Pd+i}, s{sCM}, v{Pd+i}")
        rnd4(Pd, tmp)
        for i in range(4): p(f"v_add_f32 v{Pd+i}, s{sEPS}, v{Pd+i}")
        p(f"v_cvt_pk_bf16_f32 v{out2}, v{Pd}, v{Pd+1}")
        p(f"v_cvt_pk_bf16_f32 v{out2+1}, v{Pd+2}, v{Pd+3}")

    p.wait_vm("q")
    p(f"s_cmp_lg_u32 s{sWave}, 0")
    p("s_cbranch_scc1 L_noflag")
    p("s_mov_b64 exec, 1")
    p(f"v_mov_b32 v{T}, 1")
    p(f"v_mov_b32 v{T+1}, s2")
    p(f"buffer_store_byte v{T}, v{T+1}, {sr(sDbg,4)}, 0 offen sc1")
    p("s_mov_b64 exec, -1")
    p.label("L_noflag")
    p.nvm -= 1; p.vm = p.vm[:-1]
    kblock(QB, C, S, SQ, T)
    kcombine(C)
    phi(C, S, T + 4, T)
    p(f"v_lshlrev_b32 v{T+4}, 16, v{T+4}")
    for m in range(8):
        p(f"v_readlane_b32 s{sPQ+m}, v{T+4}, {m}")

    for t in range(NT):
        buf = BUF + 32 * t
        for b in range(2):
            p.wait_vm(f"K{t}{b}")
            kblock(buf + 16 * b, C + 8 * b, S + 4 * b, SQ + 2 * b, T + 8 * b)
        if t == NT - 1:
            p(f"s_lshl_b32 s3, s{sHead}, 2")
            p(f"v_mov_b32 v{vFlag}, 0")
            p(f"buffer_load_dword v{vFlag}, v{vFlag}, {sr(sDbg,4)}, s3 offen sc1", tag="fl")
        loadV(t, buf)
        for b in range(2):
            kcombine(C + 8 * b)
            phi(C + 8 * b, S + 4 * b, PHI + 4 * t + 2 * b, T + 16)
    for t in range(NT):
        buf = BUF + 32 * t
        p.wait_vm(f"V{t}")
        A = vr(PHI + 4 * t, 4)
        p(f"v_mfma_f32_16x16x32_bf16 {vr(Z,4)}, {A}, {vr(ONESB,4)}, {vr(Z,4)}")
        for c in range(4):
            tb = T + 8 * (c & 1)
            for i in range(4):
                r0 = buf + 4 * (2 * i) + c; r1 = buf + 4 * (2 * i + 1) + c
                p(f"v_perm_b32 v{tb+i}, v{r1}, v{r0}, s{sSelLo}")
                p(f"v_perm_b32 v{tb+4+i}, v{r1}, v{r0}, s{sSelHi}")
            e0 = 2 * c
            p(f"v_mfma_f32_16x16x32_bf16 {vr(KV+4*e0,4)}, {A}, {vr(tb,4)}, {vr(KV+4*e0,4)}")
            p(f"v_mfma_f32_16x16x32_bf16 {vr(KV+4*e0+4,4)}, {A}, {vr(tb+4,4)}, {vr(KV+4*e0+4,4)}")
    p(f"s_lshl_b32 s3, s{sWave}, 12")
    p(f"v_add_u32 v{T}, s3, v{vVoff}")
    p(f"s_lshl_b32 s3, s{sWave}, 5")
    p(f"v_add_u32 v{T+1}, s3, v{vL}")
    p("s_mov_b64 exec, 0x00010001")
    p(f"ds_write_b128 v{T+1}, {vr(Z,4)} offset:32768")
    p("s_mov_b64 exec, -1")
    for e in range(0, 8, 2):
        for i in range(4):
            p(f"v_permlane32_swap_b32 v{KV+4*e+i}, v{KV+4*e+4+i}")
        p(f"ds_write_b128 v{T}, {vr(KV+4*e,4)} offset:{e*512}")
    p(f"v_lshrrev_b32 v{T+2}, 4, v{vL}")
    p(f"v_lshlrev_b32 v{T+2}, 9, v{T+2}")
    p(f"v_and_b32 v{T+3}, 15, v{vL}")
    p(f"v_lshl_add_u32 v{T+2}, v{T+3}, 4, v{T+2}")
    p(f"s_lshl_b32 s3, s{sWave}, 11")
    p(f"v_add_u32 v{T+2}, s3, v{T+2}")
    p(f"v_mov_b32 v{T+3}, 0")
    p(f"v_lshlrev_b32 v{T+4}, 5, v{vL}")
    p(f"v_readfirstlane_b32 s{sFl}, v{vFlag}")
    p(f"s_lshl_b32 s51, s{sWave}, 12")
    p(f"s_add_u32 s{sSlot}, s{sSlot}, s51")
    p("s_waitcnt lgkmcnt(0)")
    p("s_barrier")
    p(f"s_cmp_ge_u32 s{sWave}, 2")
    p("s_cbranch_scc1 L_end")
    if diag:
        p("s_memrealtime s[88:89]")
        p("s_memtime s[90:91]")
    R = BUF
    for w in range(NW):
        p(f"ds_read_b128 {vr(R+16*w,4)}, v{T+2} offset:{w*4096}")
        p(f"ds_read_b128 {vr(R+16*w+4,4)}, v{T+2} offset:{w*4096+256}")
        p(f"ds_read_b128 {vr(R+16*w+8,4)}, v{T+3} offset:{32768+w*32}")
        p(f"ds_read_b128 {vr(R+16*w+12,4)}, v{T+3} offset:{32768+w*32+16}")
    ACC = KV
    for w in range(NW):
        rem = (NW - 1 - w) * 4
        if diag and w == 0: p("s_waitcnt lgkmcnt(0)")
        else: p(f"s_waitcnt lgkmcnt({min(rem,15)})")
        for i in range(16):
            if w == 0: pass
            elif w == 1: p(f"v_add_f32 v{ACC+i}, v{R+i}, v{R+16+i}")
            else: p(f"v_add_f32 v{ACC+i}, v{ACC+i}, v{R+16*w+i}")
    for i in range(16): p(f"v_min_u32 v{ACC+i}, -2, v{ACC+i}")
    p(f"buffer_store_dwordx4 {vr(ACC,4)}, v{T+4}, {sr(sWs,4)}, s{sSlot} offen sc1")
    p(f"buffer_store_dwordx4 {vr(ACC+4,4)}, v{T+4}, {sr(sWs,4)}, s{sSlot} offen offset:16 sc1")
    p("s_mov_b64 exec, 1")
    p(f"buffer_store_dwordx4 {vr(ACC+8,4)}, v{T+4}, {sr(sWs,4)}, s{sSlot} offen offset:2048 sc1")
    p(f"buffer_store_dwordx4 {vr(ACC+12,4)}, v{T+4}, {sr(sWs,4)}, s{sSlot} offen offset:2064 sc1")
    p("s_mov_b64 exec, -1")
    p(f"s_mov_b32 s{sRound}, 0")
    p(f"s_cmp_lg_u32 s{sFl}, 0x01010101")
    p("s_cbranch_scc1 L_slow")
    p.label("L_try")
    for qq in range(4):
        p(f"s_add_u32 s3, s51, {qq*8192}")
        p(f"buffer_load_dwordx4 {vr(R+16*qq,4)}, v{T+4}, {sr(sWs,4)}, s3 offen sc1")
        p(f"buffer_load_dwordx4 {vr(R+16*qq+4,4)}, v{T+4}, {sr(sWs,4)}, s3 offen offset:16 sc1")
        p(f"buffer_load_dwordx4 {vr(R+16*qq+8,4)}, v{T+3}, {sr(sWs,4)}, s3 offen offset:2048 sc1")
        p(f"buffer_load_dwordx4 {vr(R+16*qq+12,4)}, v{T+3}, {sr(sWs,4)}, s3 offen offset:2064 sc1")
    p("s_waitcnt vmcnt(0)")
    for qq in range(4):
        p(f"s_cmp_lg_u32 s{sQuart}, {qq}")
        p(f"s_cbranch_scc1 L_own{qq}")
        for i in range(16): p(f"v_mov_b32 v{R+16*qq+i}, v{ACC+i}")
        p.label(f"L_own{qq}")
    MX = T + 5
    p(f"v_max3_u32 v{MX}, v{R}, v{R+1}, v{R+2}")
    p(f"v_max3_u32 v{MX+1}, v{R+3}, v{R+4}, v{R+5}")
    idx = 6
    tog = 0
    while idx < 64:
        p(f"v_max3_u32 v{MX+tog}, v{R+idx}, v{R+idx+1}, v{MX+tog}")
        idx += 2; tog ^= 1
    p(f"v_max_u32 v{MX}, v{MX}, v{MX+1}")
    p(f"v_cmp_eq_u32 vcc, -1, v{MX}")
    p("s_cbranch_vccz L_final")
    p(f"s_cmp_lg_u32 s{sRound}, 0")
    p("s_cbranch_scc1 L_end")
    p(f"s_mov_b32 s{sRound}, 1")
    p("s_branch L_try")
    p.label("L_slow")
    p("s_waitcnt vmcnt(0)")
    p(f"s_lshl_b32 s3, s{sHead}, 2")
    p(f"buffer_load_dword v{vFlag}, v{T+3}, {sr(sDbg,4)}, s3 offen sc1")
    p("s_waitcnt vmcnt(0)")
    p(f"v_readfirstlane_b32 s{sFl}, v{vFlag}")
    p(f"s_mov_b32 s{sRound}, 1")
    p("s_nop 3")
    p(f"s_cmp_lg_u32 s{sFl}, 0x01010101")
    p("s_cbranch_scc1 L_end")
    p("s_branch L_try")
    p.label("L_final")
    for qq in range(1, 4):
        for i in range(16):
            p(f"v_add_f32 v{R+i}, v{R+i}, v{R+16*qq+i}")
    for i in range(0, 16, 4): rnd4(R + i, T + 6 + (i // 2))
    NUM, DEN = T + 16, T + 17
    p(f"v_mul_f32 v{NUM}, s{sPQ}, v{R}")
    p(f"v_mul_f32 v{DEN}, s{sPQ}, v{R+8}")
    for m in range(1, 8):
        p(f"v_fma_f32 v{NUM}, s{sPQ+m}, v{R+m}, v{NUM}")
        p(f"v_fma_f32 v{DEN}, s{sPQ+m}, v{R+8+m}, v{DEN}")
    p(f"v_cvt_pk_bf16_f32 v{T+6}, v{NUM}, v{DEN}")
    p(f"v_lshlrev_b32 v{NUM}, 16, v{T+6}")
    p(f"v_and_b32 v{DEN}, 0xffff0000, v{T+6}")
    p(f"v_add_f32 v{DEN}, s{sEPS}, v{DEN}")
    p(f"v_cvt_pk_bf16_f32 v{T+6}, v{DEN}, v{DEN}")
    p(f"v_lshlrev_b32 v{DEN}, 16, v{T+6}")
    a, b_, c_, d_, e_ = T + 18, T + 19, T + 20, T + 21, T + 22
    p(f"v_div_scale_f32 v{a}, s[80:81], v{DEN}, v{DEN}, v{NUM}")
    p(f"v_div_scale_f32 v{b_}, vcc, v{NUM}, v{DEN}, v{NUM}")
    p(f"v_rcp_f32 v{c_}, v{a}")
    p(f"v_fma_f32 v{d_}, -v{a}, v{c_}, 1.0")
    p(f"v_fma_f32 v{c_}, v{d_}, v{c_}, v{c_}")
    p(f"v_mul_f32 v{d_}, v{b_}, v{c_}")
    p(f"v_fma_f32 v{e_}, -v{a}, v{d_}, v{b_}")
    p(f"v_fma_f32 v{d_}, v{e_}, v{c_}, v{d_}")
    p(f"v_fma_f32 v{a}, -v{a}, v{d_}, v{b_}")
    p(f"v_div_fmas_f32 v{a}, v{a}, v{c_}, v{d_}")
    p(f"v_div_fixup_f32 v{a}, v{a}, v{DEN}, v{NUM}")
    p(f"v_cvt_pk_bf16_f32 v{a}, v{a}, v{a}")
    p(f"v_and_b32 v{b_}, 15, v{vL}")
    p(f"v_lshlrev_b32 v{b_}, 4, v{b_}")
    p(f"v_lshrrev_b32 v{c_}, 4, v{vL}")
    p(f"v_lshl_add_u32 v{b_}, v{c_}, 1, v{b_}")
    p(f"s_lshl_b32 s3, s{sWave}, 3")
    p(f"buffer_store_short v{a}, v{b_}, {sr(sOut,4)}, s3 offen")
    if diag:
        p("s_waitcnt vmcnt(0)")
        p("s_memrealtime s[96:97]")
        p("s_waitcnt lgkmcnt(0)")
        p("s_branch L_diag")
    p.label("L_end")
    if diag:
        p("s_cmp_ge_u32 s2, 256")
        p("s_cbranch_scc1 L_end2")
        p(f"s_cmp_ge_u32 s{sWave}, 2")
        p("s_cbranch_scc1 L_end2")
        p("s_mov_b32 s96, 0")
        p.label("L_diag")
        p("s_lshl_b32 s92, s2, 6")
        p(f"s_lshl_b32 s93, s{sWave}, 5")
        p("s_add_u32 s92, s92, s93")
        p("s_add_u32 s92, s92, 0x1000000")
        p("s_add_u32 s92, s16, s92")
        p("s_addc_u32 s93, s17, 0")
        p("s_mov_b32 s94, 32")
        p("s_mov_b32 s95, 0x20000")
        p("s_mov_b64 exec, 1")
        p("s_sub_u32 s90, s90, s86")
        p(f"v_mov_b32 v{T}, s84")
        p(f"v_mov_b32 v{T+1}, s88")
        p(f"v_mov_b32 v{T+2}, s90")
        p(f"v_mov_b32 v{T+3}, s96")
        p(f"v_mov_b32 v{T+4}, 0")
        p(f"v_mov_b32 v{T+5}, s{sRound}")
        p(f"buffer_store_dwordx4 {vr(T,4)}, v{T+4}, s[92:95], 0 offen")
        p(f"buffer_store_dword v{T+5}, v{T+4}, s[92:95], 0 offen offset:16")
        p.label("L_end2")
    p("s_endpgm")

    lds = NW * 4096 + NW * 32
    out = HEADER
    out += f"; @launch grid=(256,1,1) block=({NW*64},1,1) lds={lds}\n"
    out += f""".amdgcn_target "amdgcn-amd-amdhsa--gfx950"
.text
.globl {NAME}_kernel
.p2align 8
.type {NAME}_kernel,@function
{NAME}_kernel:
"""
    out += p.text()
    out += f""".section .rodata,"a"
.p2align 6
.amdhsa_kernel {NAME}_kernel
  .amdhsa_next_free_vgpr 256
  .amdhsa_next_free_sgpr 100
  .amdhsa_accum_offset 256
  .amdhsa_group_segment_fixed_size 0
  .amdhsa_kernarg_size 56
  .amdhsa_user_sgpr_count 2
  .amdhsa_user_sgpr_kernarg_segment_ptr 1
  .amdhsa_system_sgpr_workgroup_id_x 1
  .amdhsa_float_denorm_mode_32 3
.end_amdhsa_kernel
"""
    return out, p

if __name__ == "__main__":
    txt, p = gen(nt=("" if "plain" in sys.argv else " nt"), diag=("diag" in sys.argv))
    open(sys.argv[1], "w").write(txt)
    print("nops inserted:", p.nops_inserted, "lines", len(p.lines))
```

```python
import struct, sys, math
from asmdsl import Prog

def f32bits(x):
    return struct.unpack("<I", struct.pack("<f", x))[0]

NAME = "standalone__linear_kernel_rfa__decode"
HEADER = open("cdna_kernels/%s.s.ref" % NAME).read().split("; Override launch")[0]

def gen(nt=" nt", diag=False, slp=4, nofast=False, noearly=False):
    NW = 8; NT = 4
    p = Prog()
    LOG2E = 1.4426950408889634
    L1b = f32bits(LOG2E) & 0xFFFFFF00
    L1 = struct.unpack("<f", struct.pack("<I", L1b))[0]
    L2b = f32bits(LOG2E - L1)
    SCALE = f32bits(128.0 ** -0.25)
    CM = f32bits(8.0 ** -0.5)
    EPS = f32bits(1e-6)
    vL, vKoff, vVoff, vM, vOne, vClampLo = 1, 2, 3, 4, 5, 6
    vSLo, vSHi = 7, 0
    ONESB = 8; W = 12; KV = 20; Z = 52; PHI = 56; C = 72; S = 88; SQ = 96; T = 100
    vL8, vZo, vPQ = 124, 125, 126
    BUF = 128
    sK, sV, sOm, sQ, sWs, sOut, sDbg = 20, 24, 28, 32, 36, 40, 44
    sWave, sHead, sQuart = 48, 49, 50
    sScale, sSelLo, sSelHi, sL1, sL2, sCM, sEPS, sClampHi = 52, 54, 55, 56, 57, 58, 59, 61
    sTB = 64
    sSlot, sRound, sFail, sSub, sHint = 82, 83, 62, 51, 63
    sSt = 18
    sTp = 72
    CY = [74, 76, 78, 80]
    LDS_Z = 32768
    LDS_V = 32768 + 256

    def vr(a, n): return f"v[{a}:{a+n-1}]"
    def sr(a, n): return f"s[{a}:{a+n-1}]"

    p("s_cmp_ge_u32 s2, 256")
    p("s_cbranch_scc1 L_end")
    p("s_load_dwordx8 s[4:11], s[0:1], 0")
    p("s_load_dwordx4 s[12:15], s[0:1], 32")
    p("s_load_dwordx2 s[16:17], s[0:1], 48")
    p(f"s_memrealtime {sr(sSt,2)}")
    if diag:
        p("s_memtime s[86:87]")
    p(f"v_and_b32 v{vL}, 63, v0")
    p(f"v_lshrrev_b32 v{vM}, 6, v0")
    p(f"v_readfirstlane_b32 s{sWave}, v{vM}")
    p(f"v_bfe_u32 v{T+3}, v{vL}, 3, 1")
    p(f"v_lshlrev_b32 v{T+3}, 6, v{T+3}")
    p(f"v_lshrrev_b32 v{T+2}, 4, v{vL}")
    p(f"v_lshl_add_u32 v{T+2}, v{T+2}, 4, v{T+3}")
    p(f"v_and_b32 v{T}, 3, v{vL}")
    p(f"v_lshlrev_b32 v{T}, 11, v{T}")
    p(f"v_bfe_u32 v{T+1}, v{vL}, 2, 1")
    p(f"v_lshlrev_b32 v{T+1}, 8, v{T+1}")
    p(f"v_add3_u32 v{vKoff}, v{T}, v{T+1}, v{T+2}")
    p(f"v_lshlrev_b32 v{vVoff}, 4, v{vL}")
    p(f"v_and_b32 v{T+3}, 7, v{vL}")
    p(f"v_lshl_add_u32 v{T+3}, v{T+3}, 8, v{T+2}")
    p(f"s_lshr_b32 s{sHead}, s2, 2")
    p(f"s_and_b32 s{sQuart}, s2, 3")
    p(f"s_lshl_b32 s3, s{sWave}, 13")
    for t in range(NT):
        p(f"s_add_u32 s{sTB+t}, s3, {t*NW*8192}")
        p(f"s_add_u32 s{sTB+4+t}, s3, {t*NW*8192+4096}")
    p(f"s_lshl_b32 s3, s2, 18")
    p("s_waitcnt lgkmcnt(0)")
    p(f"s_add_u32 s{sK}, s6, s3"); p(f"s_addc_u32 s{sK+1}, s7, 0")
    p(f"s_mov_b32 s{sK+2}, 0x40000"); p(f"s_mov_b32 s{sK+3}, 0x20000")
    def loadK(t, buf):
        for r in range(8):
            b, o, h = r >> 2, (r >> 1) & 1, r & 1
            p(f"buffer_load_dwordx4 {vr(buf+4*r,4)}, v{vKoff}, {sr(sK,4)}, s{sTB+t} offen offset:{b*1024+o*512+h*128}{nt}", tag=f"K{t}{b}")
    def loadV(t, buf):
        for r in range(8):
            b, rho = r >> 2, r & 3
            sg = 2 * rho + b
            so = sTB + t if sg < 4 else sTB + 4 + t
            p(f"buffer_load_dwordx4 {vr(buf+4*r,4)}, v{vVoff}, {sr(sV,4)}, s{so} offen offset:{(sg&3)*1024}{nt}", tag=f"V{t}")
    loadK(0, BUF)
    p(f"s_add_u32 s{sV}, s8, s3"); p(f"s_addc_u32 s{sV+1}, s9, 0")
    p(f"s_mov_b32 s{sV+2}, 0x40000"); p(f"s_mov_b32 s{sV+3}, 0x20000")
    p(f"s_mov_b32 s{sOm}, s10"); p(f"s_mov_b32 s{sOm+1}, s11")
    p(f"s_mov_b32 s{sOm+2}, 2048"); p(f"s_mov_b32 s{sOm+3}, 0x20000")
    p(f"s_lshl_b32 s3, s{sHead}, 8")
    p(f"s_add_u32 s{sQ}, s4, s3"); p(f"s_addc_u32 s{sQ+1}, s5, 0")
    p(f"s_mov_b32 s{sQ+2}, 256"); p(f"s_mov_b32 s{sQ+3}, 0x20000")
    for h in range(2):
        p(f"buffer_load_dwordx4 {vr(W+4*h,4)}, v{T+3}, {sr(sOm,4)}, 0 offen offset:{h*128}", tag="om")
    QB = T + 8
    for r in range(4):
        p(f"buffer_load_dwordx4 {vr(QB+4*r,4)}, v{T+2}, {sr(sQ,4)}, 0 offen offset:{(r&1)*128}", tag="q")
    loadK(1, BUF + 32)
    p(f"s_add_u32 s{sOut}, s12, s3"); p(f"s_addc_u32 s{sOut+1}, s13, 0")
    p(f"s_mov_b32 s{sOut+2}, 256"); p(f"s_mov_b32 s{sOut+3}, 0x20000")
    p(f"s_mov_b32 s{sDbg}, s14"); p(f"s_mov_b32 s{sDbg+1}, s15")
    p(f"s_mov_b32 s{sDbg+2}, 256"); p(f"s_mov_b32 s{sDbg+3}, 0x20000")
    p(f"s_lshl_b32 s3, s{sHead}, 16")
    p(f"s_add_u32 s{sWs}, s16, s3"); p(f"s_addc_u32 s{sWs+1}, s17, 0")
    p(f"s_mov_b32 s{sWs+2}, 0x10000"); p(f"s_mov_b32 s{sWs+3}, 0x20000")
    p(f"s_lshl_b32 s{sSub}, s{sWave}, 11")
    p(f"s_lshl_b32 s{sSlot}, s{sQuart}, 14")
    p(f"s_add_u32 s{sSlot}, s{sSlot}, s{sSub}")
    p(f"s_mov_b32 s{sScale}, {SCALE:#x}"); p(f"s_mov_b32 s{sScale+1}, {SCALE:#x}")
    p(f"s_mov_b32 s{sSelLo}, 0x05040100"); p(f"s_mov_b32 s{sSelHi}, 0x07060302")
    p(f"s_mov_b32 s{sL1}, {L1b:#x}"); p(f"s_mov_b32 s{sL2}, {L2b:#x}")
    p(f"s_mov_b32 s{sCM}, {CM:#x}"); p(f"s_mov_b32 s{sEPS}, {EPS:#x}")
    p(f"s_mov_b32 s{sClampHi}, {f32bits(200.0):#x}")
    p(f"v_mov_b32 v{vClampLo}, {f32bits(-200.0):#x}")
    p(f"v_mov_b32 v{vOne}, 1.0")
    p(f"v_mov_b32 v{vSLo}, s{sSt}")
    p(f"v_mov_b32 v{vSHi}, s{sSt+1}")
    for i in range(4): p(f"v_mov_b32 v{ONESB+i}, 0x3f803f80")
    for i in range(36): p(f"v_mov_b32 v{KV+i}, 0")
    p(f"s_cmp_lg_u32 s{sWave}, 0")
    p("s_cbranch_scc1 L_novote")
    p(f"v_mov_b32 v{T}, {LDS_V}")
    p(f"ds_write_b64 v{T}, {vr(KV,2)}")
    p.label("L_novote")

    def kblock(X, Cd, Sd, sq, tmp):
        for o in range(2):
            for h in range(2):
                x0 = X + 8 * o + 4 * h
                for c in range(4):
                    p(f"v_lshlrev_b32 v{tmp+2*c}, 16, v{x0+c}")
                    p(f"v_and_b32 v{tmp+2*c+1}, 0xffff0000, v{x0+c}")
                for c in range(4):
                    p(f"v_pk_mul_f32 {vr(tmp+2*c,2)}, {vr(tmp+2*c,2)}, {sr(sScale,2)}")
                for c in range(4):
                    p(f"v_cvt_pk_bf16_f32 v{x0+c}, v{tmp+2*c}, v{tmp+2*c+1}")
                for c in range(4):
                    src2 = "0" if (h == 0 and c == 0) else f"v{sq+o}"
                    p(f"v_dot2_f32_bf16 v{sq+o}, v{x0+c}, v{x0+c}, {src2}")
                cc = "0" if h == 0 else vr(Cd + 4 * o, 4)
                p(f"v_mfma_f32_16x16x32_bf16 {vr(Cd+4*o,4)}, {vr(x0,4)}, {vr(W+4*h,4)}, {cc}")
        p(f"v_add_f32_dpp v{sq}, v{sq}, v{sq} row_ror:8 row_mask:0xf bank_mask:0xf")
        p(f"v_add_f32_dpp v{sq+1}, v{sq+1}, v{sq+1} row_ror:8 row_mask:0xf bank_mask:0xf")
        p(f"v_mov_b32_dpp v{sq}, v{sq+1} quad_perm:[0,1,2,3] row_mask:0xf bank_mask:0xc")
        p(f"v_mfma_f32_16x16x4_f32 {vr(Sd,4)}, v{sq}, v{vOne}, 0")
    def kcombine(Cd):
        for i in range(4):
            p(f"v_permlane32_swap_b32 v{Cd+i}, v{Cd+4+i}")
        for i in range(4):
            p(f"v_add_f32_dpp v{Cd+i}, v{Cd+4+i}, v{Cd+i} row_ror:8 row_mask:0xf bank_mask:0xf")
    def rnd4(a, tmp):
        p(f"v_cvt_pk_bf16_f32 v{tmp}, v{a}, v{a+1}")
        p(f"v_cvt_pk_bf16_f32 v{tmp+1}, v{a+2}, v{a+3}")
        p(f"v_lshlrev_b32 v{a}, 16, v{tmp}")
        p(f"v_and_b32 v{a+1}, 0xffff0000, v{tmp}")
        p(f"v_lshlrev_b32 v{a+2}, 16, v{tmp+1}")
        p(f"v_and_b32 v{a+3}, 0xffff0000, v{tmp+1}")
    def phi(Pd, Sd, out2, tmp):
        rnd4(Pd, tmp); rnd4(Sd, tmp + 2)
        for i in range(4): p(f"v_fma_f32 v{Pd+i}, v{Sd+i}, -0.5, v{Pd+i}")
        rnd4(Pd, tmp)
        for i in range(4): p(f"v_med3_f32 v{Pd+i}, v{Pd+i}, v{vClampLo}, s{sClampHi}")
        for i in range(4): p(f"v_mul_f32 v{Sd+i}, s{sL1}, v{Pd+i}")
        for i in range(4): p(f"v_rndne_f32 v{tmp+i}, v{Sd+i}")
        for i in range(4): p(f"v_sub_f32 v{Sd+i}, v{Sd+i}, v{tmp+i}")
        for i in range(4): p(f"v_fma_f32 v{Sd+i}, v{Pd+i}, s{sL2}, v{Sd+i}")
        for i in range(4): p(f"v_cvt_i32_f32 v{tmp+i}, v{tmp+i}")
        for i in range(4): p(f"v_exp_f32 v{Sd+i}, v{Sd+i}")
        for i in range(4): p(f"v_ldexp_f32 v{Pd+i}, v{Sd+i}, v{tmp+i}")
        rnd4(Pd, tmp)
        for i in range(4): p(f"v_mul_f32 v{Pd+i}, s{sCM}, v{Pd+i}")
        rnd4(Pd, tmp)
        for i in range(4): p(f"v_add_f32 v{Pd+i}, s{sEPS}, v{Pd+i}")
        p(f"v_cvt_pk_bf16_f32 v{out2}, v{Pd}, v{Pd+1}")
        p(f"v_cvt_pk_bf16_f32 v{out2+1}, v{Pd+2}, v{Pd+3}")

    p.wait_vm("q")
    kblock(QB, C, S, SQ, T)
    kcombine(C)
    phi(C, S, T + 4, T)
    p(f"v_lshlrev_b32 v{T+4}, 16, v{T+4}")
    p(f"v_lshrrev_b32 v{T+5}, 5, v{vL}")
    p(f"v_lshlrev_b32 v{T+5}, 1, v{T+5}")
    p(f"v_and_b32 v{T+6}, 1, v{vL}")
    p(f"v_add_u32 v{T+5}, v{T+5}, v{T+6}")
    p(f"v_lshlrev_b32 v{vZo}, 3, v{T+5}")
    p(f"v_add_u32 v{T+6}, 4, v{vZo}")
    p(f"ds_bpermute_b32 v{vPQ}, v{vZo}, v{T+4}")
    p(f"ds_bpermute_b32 v{vPQ+1}, v{T+6}, v{T+4}")
    p(f"v_lshlrev_b32 v{vL8}, 3, v{vL}")
    p(f"v_lshlrev_b32 v{vM}, 1, v{vZo}")
    p("s_waitcnt lgkmcnt(0)")

    def procK(t, buf, after_wait=None):
        for b in range(2):
            p.wait_vm(f"K{t}{b}")
            if b == 1 and after_wait: after_wait()
            kblock(buf + 16 * b, C + 8 * b, S + 4 * b, SQ + 2 * b, T + 8 * b)
    def phiK(t):
        for b in range(2):
            kcombine(C + 8 * b)
            phi(C + 8 * b, S + 4 * b, PHI + 4 * t + 2 * b, T + 16)
    def procV(t, buf, after_wait=None, nowait=False):
        if not nowait: p.wait_vm(f"V{t}")
        if after_wait: after_wait()
        A = vr(PHI + 4 * t, 4)
        p(f"v_mfma_f32_16x16x32_bf16 {vr(Z,4)}, {A}, {vr(ONESB,4)}, {vr(Z,4)}")
        for c in range(4):
            tb = T + 8 * (c & 1)
            for i in range(4):
                r0 = buf + 4 * (2 * i) + c; r1 = buf + 4 * (2 * i + 1) + c
                p(f"v_perm_b32 v{tb+i}, v{r1}, v{r0}, s{sSelLo}")
                p(f"v_perm_b32 v{tb+4+i}, v{r1}, v{r0}, s{sSelHi}")
            e0 = 2 * c
            p(f"v_mfma_f32_16x16x32_bf16 {vr(KV+4*e0,4)}, {A}, {vr(tb,4)}, {vr(KV+4*e0,4)}")
            p(f"v_mfma_f32_16x16x32_bf16 {vr(KV+4*e0+4,4)}, {A}, {vr(tb+4,4)}, {vr(KV+4*e0+4,4)}")
    SE, SA, SB = BUF + 96, BUF + 64, BUF + 32
    def poll(st, tag=None):
        for qq in range(4):
            p(f"s_add_u32 s3, s{sSub}, {qq*16384}")
            p(f"buffer_load_dwordx4 {vr(st+8*qq,4)}, v{vVoff}, {sr(sWs,4)}, s3 offen sc1", tag=tag)
            p(f"buffer_load_dwordx4 {vr(st+8*qq+4,4)}, v{vM}, {sr(sWs,4)}, s3 offen offset:1024 sc1", tag=tag)

    A_, B_, C_ = BUF, BUF + 32, BUF + 64
    procK(0, A_, lambda: loadV(0, C_)); phiK(0)
    procK(1, B_, lambda: loadK(2, A_)); phiK(1)
    procV(0, C_, lambda: loadV(1, B_))
    procK(2, A_, lambda: loadK(3, C_)); phiK(2)
    procV(1, B_, lambda: loadV(2, A_))
    procK(3, C_, lambda: loadV(3, B_)); phiK(3)
    procV(2, A_)
    PR = BUF + 64
    if not noearly:
        p(f"v_lshlrev_b32 v{PR+4}, 14, v{vL}")
        p("s_barrier")
        p("s_mov_b64 exec, 15")
        p(f"buffer_load_dwordx4 {vr(PR,4)}, v{PR+4}, {sr(sWs,4)}, s{sSub} offen offset:1024 sc1", tag="P")
        p("s_mov_b64 exec, -1")
    procV(3, B_)
    p(f"s_lshl_b32 s3, s{sWave}, 12")
    p(f"v_add_u32 v{T}, s3, v{vVoff}")
    p(f"s_lshl_b32 s3, s{sWave}, 5")
    p(f"v_add_u32 v{T+1}, s3, v{vL}")
    p("s_mov_b64 exec, 0x00010001")
    p(f"ds_write_b128 v{T+1}, {vr(Z,4)} offset:{LDS_Z}")
    p("s_mov_b64 exec, -1")
    for e in range(0, 8, 2):
        for i in range(4):
            p(f"v_permlane32_swap_b32 v{KV+4*e+i}, v{KV+4*e+4+i}")
        p(f"ds_write_b128 v{T}, {vr(KV+4*e,4)} offset:{e*512}")
    p(f"s_lshl_b32 s3, s{sWave}, 9")
    p(f"v_add_u32 v{T+2}, s3, v{vL8}")
    p(f"s_mov_b32 s{sHint}, 0")
    if not noearly:
        p("s_waitcnt vmcnt(0)")
        p(f"v_sub_co_u32 v{T+4}, vcc, v{PR+2}, v{vSLo}")
        p(f"v_subb_co_u32 v{T+5}, vcc, v{PR+3}, v{vSHi}, vcc")
        p(f"v_lshrrev_b32 v{T+4}, 24, v{T+4}")
        p(f"v_or_b32 v{T+4}, v{T+4}, v{T+5}")
        p(f"v_cmp_eq_u32 vcc, 0, v{T+4}")
        p(f"s_lshl_b32 s3, 1, s{sQuart}")
        p("s_nop 1")
        p("s_or_b32 s3, s3, vcc_lo")
        p("s_and_b32 s3, s3, 15")
        p("s_cmp_lg_u32 s3, 15")
        p("s_cbranch_scc1 L_nohint")
        p(f"s_mov_b32 s{sHint}, 1")
        poll(SE)
        p.label("L_nohint")
    p("s_waitcnt lgkmcnt(0)")
    p("s_barrier")
    p(f"s_memrealtime {sr(sTp,2)}")
    if diag:
        p("s_memtime s[90:91]")
    RD = BUF
    for w in range(NW):
        p(f"ds_read_b64 {vr(RD+4*w,2)}, v{T+2} offset:{w*4096}")
        p(f"ds_read_b64 {vr(RD+4*w+2,2)}, v{vZo} offset:{LDS_Z+w*32}")
    PUB = KV
    p("s_waitcnt lgkmcnt(0)")
    for w in range(1, NW):
        for i in range(4):
            d = PUB + (i if i < 2 else i + 2)
            a0 = RD + i if w == 1 else d
            p(f"v_add_f32 v{d}, v{a0}, v{RD+4*w+i}")
    p(f"v_mov_b32 v{PUB+2}, s{sTp}"); p(f"v_mov_b32 v{PUB+3}, s{sTp+1}")
    p(f"v_mov_b32 v{PUB+6}, s{sTp}"); p(f"v_mov_b32 v{PUB+7}, s{sTp+1}")
    if diag:
        p("s_memrealtime s[98:99]")
        p("s_mov_b32 s100, 0")
        p("s_mov_b32 s96, 0")
    p(f"buffer_store_dwordx4 {vr(PUB,4)}, v{vVoff}, {sr(sWs,4)}, s{sSlot} offen sc1")
    p("s_mov_b32 exec_lo, 3")
    p("s_mov_b32 exec_hi, 3")
    p(f"buffer_store_dwordx4 {vr(PUB+4,4)}, v{vM}, {sr(sWs,4)}, s{sSlot} offen offset:1024 sc1")
    p("s_mov_b64 exec, -1")
    SUM = T + 8
    def own(st, tagn):
        for qq in range(4):
            p(f"s_cmp_lg_u32 s{sQuart}, {qq}")
            p(f"s_cbranch_scc1 L_own{tagn}_{qq}")
            for i in range(8): p(f"v_mov_b32 v{st+8*qq+i}, v{PUB+i}")
            p.label(f"L_own{tagn}_{qq}")
    def sums(st):
        off = [0, 1, 4, 5]
        for i in range(4): p(f"v_add_f32 v{SUM+i}, v{st+off[i]}, v{st+8+off[i]}")
        for i in range(4): p(f"v_add_f32 v{SUM+i}, v{SUM+i}, v{st+16+off[i]}")
        for i in range(4): p(f"v_add_f32 v{SUM+i}, v{SUM+i}, v{st+24+off[i]}")
    def check(st, tagn, rnd):
        own(st, tagn)
        D = T + 12; E_ = T + 16; BAD = T + 5
        for half in range(2):
            for k2 in range(4):
                g = st + 4 * (4 * half + k2)
                p(f"v_sub_co_u32 v{D+k2}, {sr(CY[k2],2)}, v{g+2}, v{vSLo}")
            for k2 in range(4):
                g = st + 4 * (4 * half + k2)
                p(f"v_subb_co_u32 v{E_+k2}, {sr(CY[k2],2)}, v{g+3}, v{vSHi}, {sr(CY[k2],2)}")
            for k2 in range(4):
                p(f"v_lshrrev_b32 v{D+k2}, 24, v{D+k2}")
            for k2 in range(4):
                if half == 0 and k2 == 0: p(f"v_or_b32 v{BAD}, v{E_}, v{D}")
                else: p(f"v_or3_b32 v{BAD}, v{BAD}, v{E_+k2}, v{D+k2}")
        p(f"v_cmp_ne_u32 vcc, 0, v{BAD}")
        sums(st)
        if diag: p(f"s_mov_b32 s{sRound}, {rnd}")
        p("s_cbranch_vccz L_final")
    p(f"s_mov_b32 s{sFail}, 0")
    if not noearly:
        p(f"s_cmp_eq_u32 s{sHint}, 0")
        p("s_cbranch_scc1 L_fail")
        p("s_waitcnt vmcnt(2)")
        check(SE, "e", 0)
        p.label("L_fail")
    p(f"s_mov_b32 s{sFail}, 1")
    p(f"v_mov_b32 v{T}, {LDS_V}")
    p(f"v_mov_b32 v{T+1}, 1")
    p(f"ds_write_b32 v{T}, v{T+1}")
    p("s_branch L_join")
    p.label("L_final")
    if diag: p("s_memrealtime s[100:101]")
    rnd4(SUM, T + 6)
    NUM, DEN = T + 16, T + 17
    p(f"v_mul_f32 v{NUM}, v{vPQ}, v{SUM}")
    p(f"v_mul_f32 v{DEN}, v{vPQ}, v{SUM+2}")
    p(f"v_fma_f32 v{NUM}, v{vPQ+1}, v{SUM+1}, v{NUM}")
    p(f"v_fma_f32 v{DEN}, v{vPQ+1}, v{SUM+3}, v{DEN}")
    p(f"v_add_f32_dpp v{NUM}, v{NUM}, v{NUM} quad_perm:[1,0,3,2] row_mask:0xf bank_mask:0xf")
    p(f"v_add_f32_dpp v{DEN}, v{DEN}, v{DEN} quad_perm:[1,0,3,2] row_mask:0xf bank_mask:0xf")
    p(f"v_mov_b32 v{T+6}, v{NUM}")
    p(f"v_mov_b32 v{T+7}, v{DEN}")
    p(f"v_permlane32_swap_b32 v{NUM}, v{T+6}")
    p(f"v_permlane32_swap_b32 v{DEN}, v{T+7}")
    p(f"v_add_f32 v{NUM}, v{NUM}, v{T+6}")
    p(f"v_add_f32 v{DEN}, v{DEN}, v{T+7}")
    p(f"v_cvt_pk_bf16_f32 v{T+6}, v{NUM}, v{DEN}")
    p(f"v_lshlrev_b32 v{NUM}, 16, v{T+6}")
    p(f"v_and_b32 v{DEN}, 0xffff0000, v{T+6}")
    p(f"v_add_f32 v{DEN}, s{sEPS}, v{DEN}")
    p(f"v_cvt_pk_bf16_f32 v{T+6}, v{DEN}, v{DEN}")
    p(f"v_lshlrev_b32 v{DEN}, 16, v{T+6}")
    a, b_, c_, d_, e_ = T + 18, T + 19, T + 20, T + 21, T + 22
    p(f"v_div_scale_f32 v{a}, s[80:81], v{DEN}, v{DEN}, v{NUM}")
    p(f"v_div_scale_f32 v{b_}, vcc, v{NUM}, v{DEN}, v{NUM}")
    p(f"v_rcp_f32 v{c_}, v{a}")
    p(f"v_fma_f32 v{d_}, -v{a}, v{c_}, 1.0")
    p(f"v_fma_f32 v{c_}, v{d_}, v{c_}, v{c_}")
    p(f"v_mul_f32 v{d_}, v{b_}, v{c_}")
    p(f"v_fma_f32 v{e_}, -v{a}, v{d_}, v{b_}")
    p(f"v_fma_f32 v{d_}, v{e_}, v{c_}, v{d_}")
    p(f"v_fma_f32 v{a}, -v{a}, v{d_}, v{b_}")
    p(f"v_div_fmas_f32 v{a}, v{a}, v{c_}, v{d_}")
    p(f"v_div_fixup_f32 v{a}, v{a}, v{DEN}, v{NUM}")
    p(f"v_cvt_pk_bf16_f32 v{a}, v{a}, v{a}")
    p(f"s_lshl_b32 s3, s{sWave}, 1")
    p("s_mov_b32 exec_lo, 0x55555555")
    p("s_mov_b32 exec_hi, 0")
    p(f"buffer_store_short v{a}, v{vL8}, {sr(sOut,4)}, s3 offen")
    p("s_mov_b64 exec, -1")
    if diag:
        p("s_waitcnt vmcnt(0)")
        p("s_memrealtime s[96:97]")
    p(f"s_cmp_eq_u32 s{sFail}, 2")
    p("s_cbranch_scc1 L_end")
    p.label("L_join")
    p("s_waitcnt vmcnt(0) lgkmcnt(0)")
    p("s_barrier")
    p(f"v_mov_b32 v{T}, {LDS_V}")
    p(f"ds_read_b32 v{T+1}, v{T}")
    p("s_waitcnt lgkmcnt(0)")
    p(f"v_readfirstlane_b32 s3, v{T+1}")
    p("s_nop 3")
    p("s_cmp_eq_u32 s3, 0")
    p("s_cbranch_scc1 L_end")
    p(f"s_cmp_lg_u32 s{sWave}, 0")
    p("s_cbranch_scc1 L_tw")
    p("s_mov_b64 exec, 1")
    p(f"v_mov_b32 v{T+1}, 1")
    p(f"s_lshl_b32 s3, s{sHead}, 2")
    p(f"v_mov_b32 v{T+2}, s3")
    p(f"buffer_atomic_add v{T+1}, v{T+2}, {sr(sDbg,4)}, 0 offen sc0")
    p("s_waitcnt vmcnt(0)")
    p(f"ds_write_b32 v{T}, v{T+1} offset:4")
    p("s_mov_b64 exec, -1")
    p("s_waitcnt lgkmcnt(0)")
    p.label("L_tw")
    p("s_barrier")
    p(f"s_cmp_eq_u32 s{sFail}, 0")
    p("s_cbranch_scc1 L_end")
    p(f"ds_read_b32 v{T+1}, v{T} offset:4")
    p("s_waitcnt lgkmcnt(0)")
    p(f"v_readfirstlane_b32 s3, v{T+1}")
    p("s_nop 3")
    p("s_cmp_lg_u32 s3, 3")
    p("s_cbranch_scc1 L_end")
    poll(SE)
    p(f"s_mov_b32 s{sFail}, 2")
    p("s_waitcnt vmcnt(0)")
    own(SE, "t")
    sums(SE)
    if diag: p(f"s_mov_b32 s{sRound}, 4")
    p("s_branch L_final")
    p.label("L_end")
    if diag:
        p("s_cmp_ge_u32 s2, 256")
        p("s_cbranch_scc1 L_end2")
        p(f"s_cmp_ge_u32 s{sWave}, 2")
        p("s_cbranch_scc1 L_end2")
        p("s_memrealtime s[88:89]")
        p("s_lshl_b32 s92, s2, 6")
        p(f"s_lshl_b32 s93, s{sWave}, 5")
        p("s_add_u32 s92, s92, s93")
        p("s_add_u32 s92, s92, 0x1000000")
        p("s_add_u32 s92, s16, s92")
        p("s_addc_u32 s93, s17, 0")
        p("s_mov_b32 s94, 32")
        p("s_mov_b32 s95, 0x20000")
        p("s_mov_b64 exec, 1")
        p("s_waitcnt lgkmcnt(0)")
        p("s_sub_u32 s90, s90, s86")
        p(f"v_mov_b32 v{T}, s{sSt}")
        p(f"v_mov_b32 v{T+1}, s{sTp}")
        p(f"v_mov_b32 v{T+2}, s90")
        p(f"v_mov_b32 v{T+3}, s88")
        p(f"v_mov_b32 v{T+4}, 0")
        p(f"v_mov_b32 v{T+8}, s{sRound}")
        p(f"v_mov_b32 v{T+9}, s98")
        p(f"v_mov_b32 v{T+10}, s100")
        p(f"v_mov_b32 v{T+11}, s96")
        p(f"buffer_store_dwordx4 {vr(T,4)}, v{T+4}, s[92:95], 0 offen")
        p(f"buffer_store_dwordx4 {vr(T+8,4)}, v{T+4}, s[92:95], 0 offen offset:16")
        p.label("L_end2")
    p("s_endpgm")

    lds = LDS_V + 16
    out = HEADER
    out += f"; @launch grid=(256,1,1) block=({NW*64},1,1) lds={lds}\n"
    out += f""".amdgcn_target "amdgcn-amd-amdhsa--gfx950"
.text
.globl {NAME}_kernel
.p2align 8
.type {NAME}_kernel,@function
{NAME}_kernel:
"""
    out += p.text()
    out += f""".section .rodata,"a"
.p2align 6
.amdhsa_kernel {NAME}_kernel
  .amdhsa_next_free_vgpr 256
  .amdhsa_next_free_sgpr 102
  .amdhsa_accum_offset 256
  .amdhsa_group_segment_fixed_size 0
  .amdhsa_kernarg_size 56
  .amdhsa_user_sgpr_count 2
  .amdhsa_user_sgpr_kernarg_segment_ptr 1
  .amdhsa_system_sgpr_workgroup_id_x 1
  .amdhsa_float_denorm_mode_32 3
.end_amdhsa_kernel
"""
    return out, p

if __name__ == "__main__":
    slp = 4
    for a in sys.argv:
        if a.startswith("slp="): slp = int(a[4:])
    txt, p = gen(nt=("" if "plain" in sys.argv else " nt"), diag=("diag" in sys.argv), slp=slp, nofast=("nofast" in sys.argv), noearly=("noearly" in sys.argv))
    open(sys.argv[1], "w").write(txt)
    print("nops inserted:", p.nops_inserted, "lines", len(p.lines))
```

```python
import struct, sys, math
from asmdsl import Prog

def f32bits(x):
    return struct.unpack("<I", struct.pack("<f", x))[0]

NAME = "standalone__linear_kernel_rfa__decode"
HEADER = open("cdna_kernels/%s.s.ref" % NAME).read().split("; Override launch")[0]

def gen(nt=" nt", diag=False, slp=4, nofast=False, noearly=False, spins=64, badtag=False, arrpos=0):
    NW = 8; NT = 4
    p = Prog()
    LOG2E = 1.4426950408889634
    L1b = f32bits(LOG2E) & 0xFFFFFF00
    L1 = struct.unpack("<f", struct.pack("<I", L1b))[0]
    L2b = f32bits(LOG2E - L1)
    SCALE = f32bits(128.0 ** -0.25)
    CM = f32bits(8.0 ** -0.5)
    EPS = f32bits(1e-6)
    vL, vKoff, vVoff, vM, vOne, vClampLo = 1, 2, 3, 4, 5, 6
    vSLo, vSHi = 7, 0
    ONESB = 8; W = 12; KV = 20; Z = 52; PHI = 56; C = 72; S = 88; SQ = 96; T = 100
    vL8, vZo, vPQ = 124, 125, 126
    BUF = 128
    sK, sV, sOm, sQ, sWs, sOut, sDbg = 20, 24, 28, 32, 36, 40, 44
    sWave, sHead, sQuart = 48, 49, 50
    sScale, sSelLo, sSelHi, sL1, sL2, sCM, sEPS, sClampHi = 52, 54, 55, 56, 57, 58, 59, 61
    sTB = 64
    sSlot, sRound, sFail, sSub, sLast = 82, 83, 62, 51, 63
    sSt = 18
    sTp = 72
    CY = [74, 76, 78, 80]
    LDS_Z = 32768
    LDS_V = 32768 + 256

    def vr(a, n): return f"v[{a}:{a+n-1}]"
    def sr(a, n): return f"s[{a}:{a+n-1}]"

    p("s_cmp_ge_u32 s2, 256")
    p("s_cbranch_scc1 L_end")
    p("s_load_dwordx8 s[4:11], s[0:1], 0")
    p("s_load_dwordx4 s[12:15], s[0:1], 32")
    p("s_load_dwordx2 s[16:17], s[0:1], 48")
    p(f"s_memrealtime {sr(sSt,2)}")
    if diag:
        p("s_memtime s[86:87]")
    p(f"v_and_b32 v{vL}, 63, v0")
    p(f"v_lshrrev_b32 v{vM}, 6, v0")
    p(f"v_readfirstlane_b32 s{sWave}, v{vM}")
    p(f"v_bfe_u32 v{T+3}, v{vL}, 3, 1")
    p(f"v_lshlrev_b32 v{T+3}, 6, v{T+3}")
    p(f"v_lshrrev_b32 v{T+2}, 4, v{vL}")
    p(f"v_lshl_add_u32 v{T+2}, v{T+2}, 4, v{T+3}")
    p(f"v_and_b32 v{T}, 3, v{vL}")
    p(f"v_lshlrev_b32 v{T}, 11, v{T}")
    p(f"v_bfe_u32 v{T+1}, v{vL}, 2, 1")
    p(f"v_lshlrev_b32 v{T+1}, 8, v{T+1}")
    p(f"v_add3_u32 v{vKoff}, v{T}, v{T+1}, v{T+2}")
    p(f"v_lshlrev_b32 v{vVoff}, 4, v{vL}")
    p(f"v_and_b32 v{T+3}, 7, v{vL}")
    p(f"v_lshl_add_u32 v{T+3}, v{T+3}, 8, v{T+2}")
    p(f"s_lshr_b32 s{sHead}, s2, 2")
    p(f"s_and_b32 s{sQuart}, s2, 3")
    p(f"s_lshl_b32 s3, s{sWave}, 13")
    for t in range(NT):
        p(f"s_add_u32 s{sTB+t}, s3, {t*NW*8192}")
        p(f"s_add_u32 s{sTB+4+t}, s3, {t*NW*8192+4096}")
    p(f"s_lshl_b32 s3, s2, 18")
    p("s_waitcnt lgkmcnt(0)")
    p(f"s_add_u32 s{sK}, s6, s3"); p(f"s_addc_u32 s{sK+1}, s7, 0")
    p(f"s_mov_b32 s{sK+2}, 0x40000"); p(f"s_mov_b32 s{sK+3}, 0x20000")
    def loadK(t, buf):
        for r in range(8):
            b, o, h = r >> 2, (r >> 1) & 1, r & 1
            p(f"buffer_load_dwordx4 {vr(buf+4*r,4)}, v{vKoff}, {sr(sK,4)}, s{sTB+t} offen offset:{b*1024+o*512+h*128}{nt}", tag=f"K{t}{b}")
    def loadV(t, buf):
        for r in range(8):
            b, rho = r >> 2, r & 3
            sg = 2 * rho + b
            so = sTB + t if sg < 4 else sTB + 4 + t
            p(f"buffer_load_dwordx4 {vr(buf+4*r,4)}, v{vVoff}, {sr(sV,4)}, s{so} offen offset:{(sg&3)*1024}{nt}", tag=f"V{t}")
    loadK(0, BUF)
    p(f"s_add_u32 s{sV}, s8, s3"); p(f"s_addc_u32 s{sV+1}, s9, 0")
    p(f"s_mov_b32 s{sV+2}, 0x40000"); p(f"s_mov_b32 s{sV+3}, 0x20000")
    p(f"s_mov_b32 s{sOm}, s10"); p(f"s_mov_b32 s{sOm+1}, s11")
    p(f"s_mov_b32 s{sOm+2}, 2048"); p(f"s_mov_b32 s{sOm+3}, 0x20000")
    p(f"s_lshl_b32 s3, s{sHead}, 8")
    p(f"s_add_u32 s{sQ}, s4, s3"); p(f"s_addc_u32 s{sQ+1}, s5, 0")
    p(f"s_mov_b32 s{sQ+2}, 256"); p(f"s_mov_b32 s{sQ+3}, 0x20000")
    for h in range(2):
        p(f"buffer_load_dwordx4 {vr(W+4*h,4)}, v{T+3}, {sr(sOm,4)}, 0 offen offset:{h*128}", tag="om")
    QB = T + 8
    for r in range(4):
        p(f"buffer_load_dwordx4 {vr(QB+4*r,4)}, v{T+2}, {sr(sQ,4)}, 0 offen offset:{(r&1)*128}", tag="q")
    loadK(1, BUF + 32)
    p(f"s_add_u32 s{sOut}, s12, s3"); p(f"s_addc_u32 s{sOut+1}, s13, 0")
    p(f"s_mov_b32 s{sOut+2}, 256"); p(f"s_mov_b32 s{sOut+3}, 0x20000")
    p(f"s_mov_b32 s{sDbg}, s14"); p(f"s_mov_b32 s{sDbg+1}, s15")
    p(f"s_mov_b32 s{sDbg+2}, 256"); p(f"s_mov_b32 s{sDbg+3}, 0x20000")
    p(f"s_lshl_b32 s3, s{sHead}, 16")
    p(f"s_add_u32 s{sWs}, s16, s3"); p(f"s_addc_u32 s{sWs+1}, s17, 0")
    p(f"s_mov_b32 s{sWs+2}, 0x10000"); p(f"s_mov_b32 s{sWs+3}, 0x20000")
    p(f"s_lshl_b32 s{sSub}, s{sWave}, 11")
    p(f"s_lshl_b32 s{sSlot}, s{sQuart}, 14")
    p(f"s_add_u32 s{sSlot}, s{sSlot}, s{sSub}")
    p(f"s_mov_b32 s{sScale}, {SCALE:#x}"); p(f"s_mov_b32 s{sScale+1}, {SCALE:#x}")
    p(f"s_mov_b32 s{sSelLo}, 0x05040100"); p(f"s_mov_b32 s{sSelHi}, 0x07060302")
    p(f"s_mov_b32 s{sL1}, {L1b:#x}"); p(f"s_mov_b32 s{sL2}, {L2b:#x}")
    p(f"s_mov_b32 s{sCM}, {CM:#x}"); p(f"s_mov_b32 s{sEPS}, {EPS:#x}")
    p(f"s_mov_b32 s{sClampHi}, {f32bits(200.0):#x}")
    p(f"v_mov_b32 v{vClampLo}, {f32bits(-200.0):#x}")
    p(f"v_mov_b32 v{vOne}, 1.0")
    p(f"v_mov_b32 v{vSLo}, s{sSt}")
    p(f"v_mov_b32 v{vSHi}, s{sSt+1}")
    for i in range(4): p(f"v_mov_b32 v{ONESB+i}, 0x3f803f80")
    for i in range(36): p(f"v_mov_b32 v{KV+i}, 0")

    def kblock(X, Cd, Sd, sq, tmp):
        for o in range(2):
            for h in range(2):
                x0 = X + 8 * o + 4 * h
                for c in range(4):
                    p(f"v_lshlrev_b32 v{tmp+2*c}, 16, v{x0+c}")
                    p(f"v_and_b32 v{tmp+2*c+1}, 0xffff0000, v{x0+c}")
                for c in range(4):
                    p(f"v_pk_mul_f32 {vr(tmp+2*c,2)}, {vr(tmp+2*c,2)}, {sr(sScale,2)}")
                for c in range(4):
                    p(f"v_cvt_pk_bf16_f32 v{x0+c}, v{tmp+2*c}, v{tmp+2*c+1}")
                for c in range(4):
                    src2 = "0" if (h == 0 and c == 0) else f"v{sq+o}"
                    p(f"v_dot2_f32_bf16 v{sq+o}, v{x0+c}, v{x0+c}, {src2}")
                cc = "0" if h == 0 else vr(Cd + 4 * o, 4)
                p(f"v_mfma_f32_16x16x32_bf16 {vr(Cd+4*o,4)}, {vr(x0,4)}, {vr(W+4*h,4)}, {cc}")
        p(f"v_add_f32_dpp v{sq}, v{sq}, v{sq} row_ror:8 row_mask:0xf bank_mask:0xf")
        p(f"v_add_f32_dpp v{sq+1}, v{sq+1}, v{sq+1} row_ror:8 row_mask:0xf bank_mask:0xf")
        p(f"v_mov_b32_dpp v{sq}, v{sq+1} quad_perm:[0,1,2,3] row_mask:0xf bank_mask:0xc")
        p(f"v_mfma_f32_16x16x4_f32 {vr(Sd,4)}, v{sq}, v{vOne}, 0")
    def kcombine(Cd):
        for i in range(4):
            p(f"v_permlane32_swap_b32 v{Cd+i}, v{Cd+4+i}")
        for i in range(4):
            p(f"v_add_f32_dpp v{Cd+i}, v{Cd+4+i}, v{Cd+i} row_ror:8 row_mask:0xf bank_mask:0xf")
    def rnd4(a, tmp):
        p(f"v_cvt_pk_bf16_f32 v{tmp}, v{a}, v{a+1}")
        p(f"v_cvt_pk_bf16_f32 v{tmp+1}, v{a+2}, v{a+3}")
        p(f"v_lshlrev_b32 v{a}, 16, v{tmp}")
        p(f"v_and_b32 v{a+1}, 0xffff0000, v{tmp}")
        p(f"v_lshlrev_b32 v{a+2}, 16, v{tmp+1}")
        p(f"v_and_b32 v{a+3}, 0xffff0000, v{tmp+1}")
    def phi(Pd, Sd, out2, tmp):
        rnd4(Pd, tmp); rnd4(Sd, tmp + 2)
        for i in range(4): p(f"v_fma_f32 v{Pd+i}, v{Sd+i}, -0.5, v{Pd+i}")
        rnd4(Pd, tmp)
        for i in range(4): p(f"v_med3_f32 v{Pd+i}, v{Pd+i}, v{vClampLo}, s{sClampHi}")
        for i in range(4): p(f"v_mul_f32 v{Sd+i}, s{sL1}, v{Pd+i}")
        for i in range(4): p(f"v_rndne_f32 v{tmp+i}, v{Sd+i}")
        for i in range(4): p(f"v_sub_f32 v{Sd+i}, v{Sd+i}, v{tmp+i}")
        for i in range(4): p(f"v_fma_f32 v{Sd+i}, v{Pd+i}, s{sL2}, v{Sd+i}")
        for i in range(4): p(f"v_cvt_i32_f32 v{tmp+i}, v{tmp+i}")
        for i in range(4): p(f"v_exp_f32 v{Sd+i}, v{Sd+i}")
        for i in range(4): p(f"v_ldexp_f32 v{Pd+i}, v{Sd+i}, v{tmp+i}")
        rnd4(Pd, tmp)
        for i in range(4): p(f"v_mul_f32 v{Pd+i}, s{sCM}, v{Pd+i}")
        rnd4(Pd, tmp)
        for i in range(4): p(f"v_add_f32 v{Pd+i}, s{sEPS}, v{Pd+i}")
        p(f"v_cvt_pk_bf16_f32 v{out2}, v{Pd}, v{Pd+1}")
        p(f"v_cvt_pk_bf16_f32 v{out2+1}, v{Pd+2}, v{Pd+3}")

    p.wait_vm("q")
    kblock(QB, C, S, SQ, T)
    kcombine(C)
    phi(C, S, T + 4, T)
    p(f"v_lshlrev_b32 v{T+4}, 16, v{T+4}")
    p(f"v_lshrrev_b32 v{T+5}, 5, v{vL}")
    p(f"v_lshlrev_b32 v{T+5}, 1, v{T+5}")
    p(f"v_and_b32 v{T+6}, 1, v{vL}")
    p(f"v_add_u32 v{T+5}, v{T+5}, v{T+6}")
    p(f"v_lshlrev_b32 v{vZo}, 3, v{T+5}")
    p(f"v_add_u32 v{T+6}, 4, v{vZo}")
    p(f"ds_bpermute_b32 v{vPQ}, v{vZo}, v{T+4}")
    p(f"ds_bpermute_b32 v{vPQ+1}, v{T+6}, v{T+4}")
    p(f"v_lshlrev_b32 v{vL8}, 3, v{vL}")
    p(f"v_lshlrev_b32 v{vM}, 1, v{vZo}")
    p("s_waitcnt lgkmcnt(0)")

    def procK(t, buf, after_wait=None):
        for b in range(2):
            p.wait_vm(f"K{t}{b}")
            if b == 1 and after_wait: after_wait()
            kblock(buf + 16 * b, C + 8 * b, S + 4 * b, SQ + 2 * b, T + 8 * b)
    def phiK(t):
        for b in range(2):
            kcombine(C + 8 * b)
            phi(C + 8 * b, S + 4 * b, PHI + 4 * t + 2 * b, T + 16)
    def procV(t, buf, after_wait=None, nowait=False):
        if not nowait: p.wait_vm(f"V{t}")
        if after_wait: after_wait()
        A = vr(PHI + 4 * t, 4)
        p(f"v_mfma_f32_16x16x32_bf16 {vr(Z,4)}, {A}, {vr(ONESB,4)}, {vr(Z,4)}")
        for c in range(4):
            tb = T + 8 * (c & 1)
            for i in range(4):
                r0 = buf + 4 * (2 * i) + c; r1 = buf + 4 * (2 * i + 1) + c
                p(f"v_perm_b32 v{tb+i}, v{r1}, v{r0}, s{sSelLo}")
                p(f"v_perm_b32 v{tb+4+i}, v{r1}, v{r0}, s{sSelHi}")
            e0 = 2 * c
            p(f"v_mfma_f32_16x16x32_bf16 {vr(KV+4*e0,4)}, {A}, {vr(tb,4)}, {vr(KV+4*e0,4)}")
            p(f"v_mfma_f32_16x16x32_bf16 {vr(KV+4*e0+4,4)}, {A}, {vr(tb+4,4)}, {vr(KV+4*e0+4,4)}")
    SE, SA, SB = BUF + 96, BUF + 64, BUF + 32
    def poll(st, tag=None):
        for qq in range(4):
            p(f"s_add_u32 s3, s{sSub}, {qq*16384}")
            p(f"buffer_load_dwordx4 {vr(st+8*qq,4)}, v{vVoff}, {sr(sWs,4)}, s3 offen sc1", tag=tag)
            p(f"buffer_load_dwordx4 {vr(st+8*qq+4,4)}, v{vM}, {sr(sWs,4)}, s3 offen offset:1024 sc1", tag=tag)

    A_, B_, C_ = BUF, BUF + 32, BUF + 64
    procK(0, A_, lambda: loadV(0, C_)); phiK(0)
    procK(1, B_, lambda: loadK(2, A_)); phiK(1)
    procV(0, C_, lambda: loadV(1, B_))
    procK(2, A_, lambda: loadK(3, C_)); phiK(2)
    procV(1, B_, lambda: loadV(2, A_))
    procK(3, C_, lambda: loadV(3, B_)); phiK(3)
    AR = BUF + 64
    def arrive():
        p(f"v_mov_b32 v{AR}, 1")
        p(f"s_lshl_b32 s3, s{sHead}, 2")
        p(f"v_mov_b32 v{AR+1}, s3")
        p("s_barrier")
        p(f"s_cmp_lg_u32 s{sWave}, 0")
        p("s_cbranch_scc1 L_noarr")
        p("s_mov_b64 exec, 1")
        p(f"buffer_atomic_add v{AR}, v{AR+1}, {sr(sDbg,4)}, 0 offen sc0")
        p.nvm -= 1; p.vm = p.vm[:-1]
        p("s_mov_b64 exec, -1")
        p.label("L_noarr")
    def wait0(n, lab):
        p(f"s_cmp_lg_u32 s{sWave}, 0")
        p(f"s_cbranch_scc1 {lab}a")
        p(f"s_waitcnt vmcnt({n+1})")
        p(f"s_branch {lab}b")
        p.label(f"{lab}a")
        p(f"s_waitcnt vmcnt({n})")
        p.label(f"{lab}b")
    if arrpos == 0:
        procV(2, A_)
        arrive()
    else:
        arrive()
        wait0(8, "L_w2")
        procV(2, A_, nowait=True)
    p("s_waitcnt vmcnt(0)")
    p(f"v_mov_b32 v{AR+2}, {LDS_V}")
    p(f"s_cmp_lg_u32 s{sWave}, 0")
    p("s_cbranch_scc1 L_nobc")
    p("s_mov_b64 exec, 1")
    p(f"ds_write_b32 v{AR+2}, v{AR}")
    p("s_mov_b64 exec, -1")
    p.label("L_nobc")
    procV(3, B_, nowait=True)
    p(f"s_lshl_b32 s3, s{sWave}, 12")
    p(f"v_add_u32 v{T}, s3, v{vVoff}")
    p(f"s_lshl_b32 s3, s{sWave}, 5")
    p(f"v_add_u32 v{T+1}, s3, v{vL}")
    p("s_mov_b64 exec, 0x00010001")
    p(f"ds_write_b128 v{T+1}, {vr(Z,4)} offset:{LDS_Z}")
    p("s_mov_b64 exec, -1")
    for e in range(0, 8, 2):
        for i in range(4):
            p(f"v_permlane32_swap_b32 v{KV+4*e+i}, v{KV+4*e+4+i}")
        p(f"ds_write_b128 v{T}, {vr(KV+4*e,4)} offset:{e*512}")
    p(f"s_lshl_b32 s3, s{sWave}, 9")
    p(f"v_add_u32 v{T+2}, s3, v{vL8}")
    p("s_waitcnt lgkmcnt(0)")
    p("s_barrier")
    p(f"s_memrealtime {sr(sTp,2)}")
    if diag:
        p("s_memtime s[90:91]")
    RD = BUF
    p(f"ds_read_b32 v{T+1}, v{AR+2}")
    for w in range(NW):
        p(f"ds_read_b64 {vr(RD+4*w,2)}, v{T+2} offset:{w*4096}")
        p(f"ds_read_b64 {vr(RD+4*w+2,2)}, v{vZo} offset:{LDS_Z+w*32}")
    PUB = KV
    p("s_waitcnt lgkmcnt(0)")
    p(f"v_readfirstlane_b32 s{sLast}, v{T+1}")
    p(f"s_mov_b32 s{sFail}, {spins}")
    p("s_nop 2")
    p(f"s_and_b32 s{sLast}, s{sLast}, 0xff")
    p(f"s_cmp_lg_u32 s{sLast}, 3")
    p("s_cbranch_scc1 L_red")
    poll(SE)
    p.label("L_red")
    for w in range(1, NW):
        for i in range(4):
            d = PUB + (i if i < 2 else i + 2)
            a0 = RD + i if w == 1 else d
            p(f"v_add_f32 v{d}, v{a0}, v{RD+4*w+i}")
    if badtag: p(f"s_mov_b32 s{sTp+1}, 0")
    p(f"v_mov_b32 v{PUB+2}, s{sTp}"); p(f"v_mov_b32 v{PUB+3}, s{sTp+1}")
    p(f"v_mov_b32 v{PUB+6}, s{sTp}"); p(f"v_mov_b32 v{PUB+7}, s{sTp+1}")
    if diag:
        p("s_memrealtime s[98:99]")
        p("s_mov_b32 s100, 0")
        p("s_mov_b32 s96, 0")
        p(f"s_mov_b32 s{sRound}, 9")
    SUM = T + 8
    def own(st, tagn):
        for qq in range(4):
            p(f"s_cmp_lg_u32 s{sQuart}, {qq}")
            p(f"s_cbranch_scc1 L_own{tagn}_{qq}")
            for i in range(8): p(f"v_mov_b32 v{st+8*qq+i}, v{PUB+i}")
            p.label(f"L_own{tagn}_{qq}")
    def sums(st):
        off = [0, 1, 4, 5]
        for i in range(4): p(f"v_add_f32 v{SUM+i}, v{st+off[i]}, v{st+8+off[i]}")
        for i in range(4): p(f"v_add_f32 v{SUM+i}, v{SUM+i}, v{st+16+off[i]}")
        for i in range(4): p(f"v_add_f32 v{SUM+i}, v{SUM+i}, v{st+24+off[i]}")
    def check(st, tagn, rnd):
        own(st, tagn)
        D = T + 12; E_ = T + 16; BAD = T + 5
        for half in range(2):
            for k2 in range(4):
                g = st + 4 * (4 * half + k2)
                p(f"v_sub_co_u32 v{D+k2}, {sr(CY[k2],2)}, v{g+2}, v{vSLo}")
            for k2 in range(4):
                g = st + 4 * (4 * half + k2)
                p(f"v_subb_co_u32 v{E_+k2}, {sr(CY[k2],2)}, v{g+3}, v{vSHi}, {sr(CY[k2],2)}")
            for k2 in range(4):
                p(f"v_lshrrev_b32 v{D+k2}, 24, v{D+k2}")
            for k2 in range(4):
                if half == 0 and k2 == 0: p(f"v_or_b32 v{BAD}, v{E_}, v{D}")
                else: p(f"v_or3_b32 v{BAD}, v{BAD}, v{E_+k2}, v{D+k2}")
        p(f"v_cmp_ne_u32 vcc, 0, v{BAD}")
        sums(st)
        if diag and rnd is not None: p(f"s_mov_b32 s{sRound}, {rnd}")
        p("s_cbranch_vccz L_final")
    p(f"s_cmp_lg_u32 s{sLast}, 3")
    p("s_cbranch_scc1 L_notlast")
    if diag: p(f"s_mov_b32 s{sRound}, 0")
    p("s_branch L_spin1")
    p.label("L_spin")
    poll(SE)
    p.label("L_spin1")
    p("s_waitcnt vmcnt(0)")
    check(SE, "e", None)
    if diag: p(f"s_add_u32 s{sRound}, s{sRound}, 1")
    p(f"s_sub_u32 s{sFail}, s{sFail}, 1")
    p(f"s_cmp_lg_u32 s{sFail}, 0")
    p("s_cbranch_scc1 L_spin")
    p.label("L_rare")
    p(f"buffer_load_dword v{T+1}, v{AR+1}, {sr(sDbg,4)}, 0 offen sc1")
    p("s_waitcnt vmcnt(0)")
    p(f"v_readfirstlane_b32 s3, v{T+1}")
    p("s_nop 3")
    p("s_bfe_u32 s3, s3, 0x80008")
    p("s_cmp_lg_u32 s3, 3")
    p("s_cbranch_scc0 L_rare2")
    p("s_sleep 8")
    p("s_branch L_rare")
    p.label("L_rare2")
    poll(SE)
    p("s_waitcnt vmcnt(0)")
    own(SE, "t")
    sums(SE)
    p("s_branch L_final")
    p.label("L_notlast")
    p(f"buffer_store_dwordx4 {vr(PUB,4)}, v{vVoff}, {sr(sWs,4)}, s{sSlot} offen sc1")
    p("s_mov_b32 exec_lo, 3")
    p("s_mov_b32 exec_hi, 3")
    p(f"buffer_store_dwordx4 {vr(PUB+4,4)}, v{vM}, {sr(sWs,4)}, s{sSlot} offen offset:1024 sc1")
    p("s_mov_b64 exec, -1")
    p("s_waitcnt vmcnt(0)")
    p("s_barrier")
    p(f"s_cmp_lg_u32 s{sWave}, 0")
    p("s_cbranch_scc1 L_end")
    p("s_mov_b64 exec, 1")
    p(f"v_mov_b32 v{AR}, 0x100")
    p(f"buffer_atomic_add v{AR}, v{AR+1}, {sr(sDbg,4)}, 0 offen")
    p("s_mov_b64 exec, -1")
    p("s_branch L_end")
    p.label("L_final")
    if diag: p("s_memrealtime s[100:101]")
    rnd4(SUM, T + 6)
    NUM, DEN = T + 16, T + 17
    p(f"v_mul_f32 v{NUM}, v{vPQ}, v{SUM}")
    p(f"v_mul_f32 v{DEN}, v{vPQ}, v{SUM+2}")
    p(f"v_fma_f32 v{NUM}, v{vPQ+1}, v{SUM+1}, v{NUM}")
    p(f"v_fma_f32 v{DEN}, v{vPQ+1}, v{SUM+3}, v{DEN}")
    p(f"v_add_f32_dpp v{NUM}, v{NUM}, v{NUM} quad_perm:[1,0,3,2] row_mask:0xf bank_mask:0xf")
    p(f"v_add_f32_dpp v{DEN}, v{DEN}, v{DEN} quad_perm:[1,0,3,2] row_mask:0xf bank_mask:0xf")
    p(f"v_mov_b32 v{T+6}, v{NUM}")
    p(f"v_mov_b32 v{T+7}, v{DEN}")
    p(f"v_permlane32_swap_b32 v{NUM}, v{T+6}")
    p(f"v_permlane32_swap_b32 v{DEN}, v{T+7}")
    p(f"v_add_f32 v{NUM}, v{NUM}, v{T+6}")
    p(f"v_add_f32 v{DEN}, v{DEN}, v{T+7}")
    p(f"v_cvt_pk_bf16_f32 v{T+6}, v{NUM}, v{DEN}")
    p(f"v_lshlrev_b32 v{NUM}, 16, v{T+6}")
    p(f"v_and_b32 v{DEN}, 0xffff0000, v{T+6}")
    p(f"v_add_f32 v{DEN}, s{sEPS}, v{DEN}")
    p(f"v_cvt_pk_bf16_f32 v{T+6}, v{DEN}, v{DEN}")
    p(f"v_lshlrev_b32 v{DEN}, 16, v{T+6}")
    a, b_, c_, d_, e_ = T + 18, T + 19, T + 20, T + 21, T + 22
    p(f"v_div_scale_f32 v{a}, s[80:81], v{DEN}, v{DEN}, v{NUM}")
    p(f"v_div_scale_f32 v{b_}, vcc, v{NUM}, v{DEN}, v{NUM}")
    p(f"v_rcp_f32 v{c_}, v{a}")
    p(f"v_fma_f32 v{d_}, -v{a}, v{c_}, 1.0")
    p(f"v_fma_f32 v{c_}, v{d_}, v{c_}, v{c_}")
    p(f"v_mul_f32 v{d_}, v{b_}, v{c_}")
    p(f"v_fma_f32 v{e_}, -v{a}, v{d_}, v{b_}")
    p(f"v_fma_f32 v{d_}, v{e_}, v{c_}, v{d_}")
    p(f"v_fma_f32 v{a}, -v{a}, v{d_}, v{b_}")
    p(f"v_div_fmas_f32 v{a}, v{a}, v{c_}, v{d_}")
    p(f"v_div_fixup_f32 v{a}, v{a}, v{DEN}, v{NUM}")
    p(f"v_cvt_pk_bf16_f32 v{a}, v{a}, v{a}")
    p(f"s_lshl_b32 s3, s{sWave}, 1")
    p("s_mov_b32 exec_lo, 0x55555555")
    p("s_mov_b32 exec_hi, 0")
    p(f"buffer_store_short v{a}, v{vL8}, {sr(sOut,4)}, s3 offen")
    p("s_mov_b64 exec, -1")
    if diag:
        p("s_waitcnt vmcnt(0)")
        p("s_memrealtime s[96:97]")
    p.label("L_end")
    if diag:
        p("s_cmp_ge_u32 s2, 256")
        p("s_cbranch_scc1 L_end2")
        p(f"s_cmp_ge_u32 s{sWave}, 2")
        p("s_cbranch_scc1 L_end2")
        p("s_memrealtime s[88:89]")
        p("s_lshl_b32 s92, s2, 6")
        p(f"s_lshl_b32 s93, s{sWave}, 5")
        p("s_add_u32 s92, s92, s93")
        p("s_add_u32 s92, s92, 0x1000000")
        p("s_add_u32 s92, s16, s92")
        p("s_addc_u32 s93, s17, 0")
        p("s_mov_b32 s94, 32")
        p("s_mov_b32 s95, 0x20000")
        p("s_mov_b64 exec, 1")
        p("s_waitcnt lgkmcnt(0)")
        p("s_sub_u32 s90, s90, s86")
        p(f"v_mov_b32 v{T}, s{sSt}")
        p(f"v_mov_b32 v{T+1}, s{sTp}")
        p(f"v_mov_b32 v{T+2}, s90")
        p(f"v_mov_b32 v{T+3}, s88")
        p(f"v_mov_b32 v{T+4}, 0")
        p(f"v_mov_b32 v{T+8}, s{sRound}")
        p(f"v_mov_b32 v{T+9}, s98")
        p(f"v_mov_b32 v{T+10}, s100")
        p(f"v_mov_b32 v{T+11}, s96")
        p(f"buffer_store_dwordx4 {vr(T,4)}, v{T+4}, s[92:95], 0 offen")
        p(f"buffer_store_dwordx4 {vr(T+8,4)}, v{T+4}, s[92:95], 0 offen offset:16")
        p.label("L_end2")
    p("s_endpgm")

    lds = LDS_V + 16
    out = HEADER
    out += f"; @launch grid=(256,1,1) block=({NW*64},1,1) lds={lds}\n"
    out += f""".amdgcn_target "amdgcn-amd-amdhsa--gfx950"
.text
.globl {NAME}_kernel
.p2align 8
.type {NAME}_kernel,@function
{NAME}_kernel:
"""
    out += p.text()
    out += f""".section .rodata,"a"
.p2align 6
.amdhsa_kernel {NAME}_kernel
  .amdhsa_next_free_vgpr 256
  .amdhsa_next_free_sgpr 102
  .amdhsa_accum_offset 256
  .amdhsa_group_segment_fixed_size 0
  .amdhsa_kernarg_size 56
  .amdhsa_user_sgpr_count 2
  .amdhsa_user_sgpr_kernarg_segment_ptr 1
  .amdhsa_system_sgpr_workgroup_id_x 1
  .amdhsa_float_denorm_mode_32 3
.end_amdhsa_kernel
"""
    return out, p

if __name__ == "__main__":
    slp = 4
    for a in sys.argv:
        if a.startswith("slp="): slp = int(a[4:])
    txt, p = gen(nt=("" if "plain" in sys.argv else " nt"), diag=("diag" in sys.argv), slp=slp, nofast=("nofast" in sys.argv), noearly=("noearly" in sys.argv), spins=(1 if "spin1" in sys.argv else 64), badtag=("badtag" in sys.argv), arrpos=(1 if "arr1" in sys.argv else 0))
    open(sys.argv[1], "w").write(txt)
    print("nops inserted:", p.nops_inserted, "lines", len(p.lines))
```

```python
import struct, sys, math
from asmdsl import Prog

def f32bits(x):
    return struct.unpack("<I", struct.pack("<f", x))[0]

NAME = "standalone__linear_kernel_rfa__decode"
HEADER = open("cdna_kernels/%s.s.ref" % NAME).read().split("; Override launch")[0]

def gen(nt=" nt", diag=False, slp=4, nofast=False, noearly=False, spins=64, badtag=False, arrpos=0, sched="B", nok=False, nophi=False, nov=False, nobarA=False, pubmode=0):
    NW = 8; NT = 4
    p = Prog()
    LOG2E = 1.4426950408889634
    L1b = f32bits(LOG2E) & 0xFFFFFF00
    L1 = struct.unpack("<f", struct.pack("<I", L1b))[0]
    L2b = f32bits(LOG2E - L1)
    SCALE = f32bits(128.0 ** -0.25)
    CM = f32bits(8.0 ** -0.5)
    EPS = f32bits(1e-6)
    vL, vKoff, vVoff, vM, vOne, vClampLo = 1, 2, 3, 4, 5, 6
    vSLo, vSHi = 7, 0
    ONESB = 8; W = 12; KV = 20; Z = 52; PHI = 56; C = 72; S = 88; SQ = 96; T = 100
    vL8, vZo, vPQ = 124, 125, 126
    BUF = 128
    sK, sV, sOm, sQ, sWs, sOut, sDbg = 20, 24, 28, 32, 36, 40, 44
    sWave, sHead, sQuart = 48, 49, 50
    sScale, sSelLo, sSelHi, sL1, sL2, sCM, sEPS, sClampHi = 52, 54, 55, 56, 57, 58, 59, 61
    sTB = 64
    sSlot, sRound, sFail, sSub, sLast = 82, 83, 62, 51, 63
    sSt = 18
    sTp = 72
    CY = [74, 76, 78, 80]
    LDS_Z = 32768
    LDS_V = 32768 + 256

    def vr(a, n): return f"v[{a}:{a+n-1}]"
    def sr(a, n): return f"s[{a}:{a+n-1}]"

    p("s_cmp_ge_u32 s2, 256")
    p("s_cbranch_scc1 L_end")
    p("s_load_dwordx8 s[4:11], s[0:1], 0")
    p("s_load_dwordx4 s[12:15], s[0:1], 32")
    p("s_load_dwordx2 s[16:17], s[0:1], 48")
    p(f"s_memrealtime {sr(sSt,2)}")
    if diag:
        p("s_memtime s[86:87]")
    p(f"v_and_b32 v{vL}, 63, v0")
    p(f"v_lshrrev_b32 v{vM}, 6, v0")
    p(f"v_readfirstlane_b32 s{sWave}, v{vM}")
    p(f"v_bfe_u32 v{T+3}, v{vL}, 3, 1")
    p(f"v_lshlrev_b32 v{T+3}, 6, v{T+3}")
    p(f"v_lshrrev_b32 v{T+2}, 4, v{vL}")
    p(f"v_lshl_add_u32 v{T+2}, v{T+2}, 4, v{T+3}")
    p(f"v_and_b32 v{T}, 3, v{vL}")
    p(f"v_lshlrev_b32 v{T}, 11, v{T}")
    p(f"v_bfe_u32 v{T+1}, v{vL}, 2, 1")
    p(f"v_lshlrev_b32 v{T+1}, 8, v{T+1}")
    p(f"v_add3_u32 v{vKoff}, v{T}, v{T+1}, v{T+2}")
    p(f"v_lshlrev_b32 v{vVoff}, 4, v{vL}")
    p(f"v_and_b32 v{T+3}, 7, v{vL}")
    p(f"v_lshl_add_u32 v{T+3}, v{T+3}, 8, v{T+2}")
    p(f"s_lshr_b32 s{sHead}, s2, 2")
    p(f"s_and_b32 s{sQuart}, s2, 3")
    p(f"s_lshl_b32 s3, s{sWave}, 13")
    for t in range(NT):
        p(f"s_add_u32 s{sTB+t}, s3, {t*NW*8192}")
        p(f"s_add_u32 s{sTB+4+t}, s3, {t*NW*8192+4096}")
    p(f"s_lshl_b32 s3, s2, 18")
    p("s_waitcnt lgkmcnt(0)")
    p(f"s_add_u32 s{sK}, s6, s3"); p(f"s_addc_u32 s{sK+1}, s7, 0")
    p(f"s_mov_b32 s{sK+2}, 0x40000"); p(f"s_mov_b32 s{sK+3}, 0x20000")
    def loadK(t, buf):
        for r in range(8):
            b, o, h = r >> 2, (r >> 1) & 1, r & 1
            p(f"buffer_load_dwordx4 {vr(buf+4*r,4)}, v{vKoff}, {sr(sK,4)}, s{sTB+t} offen offset:{b*1024+o*512+h*128}{nt}", tag=f"K{t}{b}")
    def loadV(t, buf):
        for r in range(8):
            b, rho = r >> 2, r & 3
            sg = 2 * rho + b
            so = sTB + t if sg < 4 else sTB + 4 + t
            p(f"buffer_load_dwordx4 {vr(buf+4*r,4)}, v{vVoff}, {sr(sV,4)}, s{so} offen offset:{(sg&3)*1024}{nt}", tag=f"V{t}")
    loadK(0, BUF)
    p(f"s_add_u32 s{sV}, s8, s3"); p(f"s_addc_u32 s{sV+1}, s9, 0")
    p(f"s_mov_b32 s{sV+2}, 0x40000"); p(f"s_mov_b32 s{sV+3}, 0x20000")
    p(f"s_mov_b32 s{sOm}, s10"); p(f"s_mov_b32 s{sOm+1}, s11")
    p(f"s_mov_b32 s{sOm+2}, 2048"); p(f"s_mov_b32 s{sOm+3}, 0x20000")
    p(f"s_lshl_b32 s3, s{sHead}, 8")
    p(f"s_add_u32 s{sQ}, s4, s3"); p(f"s_addc_u32 s{sQ+1}, s5, 0")
    p(f"s_mov_b32 s{sQ+2}, 256"); p(f"s_mov_b32 s{sQ+3}, 0x20000")
    for h in range(2):
        p(f"buffer_load_dwordx4 {vr(W+4*h,4)}, v{T+3}, {sr(sOm,4)}, 0 offen offset:{h*128}", tag="om")
    QB = T + 8
    for r in range(4):
        p(f"buffer_load_dwordx4 {vr(QB+4*r,4)}, v{T+2}, {sr(sQ,4)}, 0 offen offset:{(r&1)*128}", tag="q")
    if sched != "E": loadK(1, BUF + 32)
    if sched == "D": loadV(0, BUF + 64)
    p(f"s_add_u32 s{sOut}, s12, s3"); p(f"s_addc_u32 s{sOut+1}, s13, 0")
    p(f"s_mov_b32 s{sOut+2}, 256"); p(f"s_mov_b32 s{sOut+3}, 0x20000")
    p(f"s_mov_b32 s{sDbg}, s14"); p(f"s_mov_b32 s{sDbg+1}, s15")
    p(f"s_mov_b32 s{sDbg+2}, 256"); p(f"s_mov_b32 s{sDbg+3}, 0x20000")
    p(f"s_lshl_b32 s3, s{sHead}, 16")
    p(f"s_add_u32 s{sWs}, s16, s3"); p(f"s_addc_u32 s{sWs+1}, s17, 0")
    p(f"s_mov_b32 s{sWs+2}, 0x10000"); p(f"s_mov_b32 s{sWs+3}, 0x20000")
    p(f"s_lshl_b32 s{sSub}, s{sWave}, 11")
    p(f"s_lshl_b32 s{sSlot}, s{sQuart}, 14")
    p(f"s_add_u32 s{sSlot}, s{sSlot}, s{sSub}")
    p(f"s_mov_b32 s{sScale}, {SCALE:#x}"); p(f"s_mov_b32 s{sScale+1}, {SCALE:#x}")
    p(f"s_mov_b32 s{sSelLo}, 0x05040100"); p(f"s_mov_b32 s{sSelHi}, 0x07060302")
    p(f"s_mov_b32 s{sL1}, {L1b:#x}"); p(f"s_mov_b32 s{sL2}, {L2b:#x}")
    p(f"s_mov_b32 s{sCM}, {CM:#x}"); p(f"s_mov_b32 s{sEPS}, {EPS:#x}")
    p(f"s_mov_b32 s{sClampHi}, {f32bits(200.0):#x}")
    p(f"v_mov_b32 v{vClampLo}, {f32bits(-200.0):#x}")
    p(f"v_mov_b32 v{vOne}, 1.0")
    p(f"v_mov_b32 v{vSLo}, s{sSt}")
    p(f"v_mov_b32 v{vSHi}, s{sSt+1}")
    for i in range(4): p(f"v_mov_b32 v{ONESB+i}, 0x3f803f80")
    for i in range(36): p(f"v_mov_b32 v{KV+i}, 0")

    def kblock(X, Cd, Sd, sq, tmp):
        for o in range(2):
            for h in range(2):
                x0 = X + 8 * o + 4 * h
                for c in range(4):
                    p(f"v_lshlrev_b32 v{tmp+2*c}, 16, v{x0+c}")
                    p(f"v_and_b32 v{tmp+2*c+1}, 0xffff0000, v{x0+c}")
                for c in range(4):
                    p(f"v_pk_mul_f32 {vr(tmp+2*c,2)}, {vr(tmp+2*c,2)}, {sr(sScale,2)}")
                for c in range(4):
                    p(f"v_cvt_pk_bf16_f32 v{x0+c}, v{tmp+2*c}, v{tmp+2*c+1}")
                for c in range(4):
                    src2 = "0" if (h == 0 and c == 0) else f"v{sq+o}"
                    p(f"v_dot2_f32_bf16 v{sq+o}, v{x0+c}, v{x0+c}, {src2}")
                cc = "0" if h == 0 else vr(Cd + 4 * o, 4)
                p(f"v_mfma_f32_16x16x32_bf16 {vr(Cd+4*o,4)}, {vr(x0,4)}, {vr(W+4*h,4)}, {cc}")
        p(f"v_add_f32_dpp v{sq}, v{sq}, v{sq} row_ror:8 row_mask:0xf bank_mask:0xf")
        p(f"v_add_f32_dpp v{sq+1}, v{sq+1}, v{sq+1} row_ror:8 row_mask:0xf bank_mask:0xf")
        p(f"v_mov_b32_dpp v{sq}, v{sq+1} quad_perm:[0,1,2,3] row_mask:0xf bank_mask:0xc")
        p(f"v_mfma_f32_16x16x4_f32 {vr(Sd,4)}, v{sq}, v{vOne}, 0")
    def kcombine(Cd):
        for i in range(4):
            p(f"v_permlane32_swap_b32 v{Cd+i}, v{Cd+4+i}")
        for i in range(4):
            p(f"v_add_f32_dpp v{Cd+i}, v{Cd+4+i}, v{Cd+i} row_ror:8 row_mask:0xf bank_mask:0xf")
    def rnd4(a, tmp):
        p(f"v_cvt_pk_bf16_f32 v{tmp}, v{a}, v{a+1}")
        p(f"v_cvt_pk_bf16_f32 v{tmp+1}, v{a+2}, v{a+3}")
        p(f"v_lshlrev_b32 v{a}, 16, v{tmp}")
        p(f"v_and_b32 v{a+1}, 0xffff0000, v{tmp}")
        p(f"v_lshlrev_b32 v{a+2}, 16, v{tmp+1}")
        p(f"v_and_b32 v{a+3}, 0xffff0000, v{tmp+1}")
    def phi(Pd, Sd, out2, tmp):
        rnd4(Pd, tmp); rnd4(Sd, tmp + 2)
        for i in range(4): p(f"v_fma_f32 v{Pd+i}, v{Sd+i}, -0.5, v{Pd+i}")
        rnd4(Pd, tmp)
        for i in range(4): p(f"v_med3_f32 v{Pd+i}, v{Pd+i}, v{vClampLo}, s{sClampHi}")
        for i in range(4): p(f"v_mul_f32 v{Sd+i}, s{sL1}, v{Pd+i}")
        for i in range(4): p(f"v_rndne_f32 v{tmp+i}, v{Sd+i}")
        for i in range(4): p(f"v_sub_f32 v{Sd+i}, v{Sd+i}, v{tmp+i}")
        for i in range(4): p(f"v_fma_f32 v{Sd+i}, v{Pd+i}, s{sL2}, v{Sd+i}")
        for i in range(4): p(f"v_cvt_i32_f32 v{tmp+i}, v{tmp+i}")
        for i in range(4): p(f"v_exp_f32 v{Sd+i}, v{Sd+i}")
        for i in range(4): p(f"v_ldexp_f32 v{Pd+i}, v{Sd+i}, v{tmp+i}")
        rnd4(Pd, tmp)
        for i in range(4): p(f"v_mul_f32 v{Pd+i}, s{sCM}, v{Pd+i}")
        rnd4(Pd, tmp)
        for i in range(4): p(f"v_add_f32 v{Pd+i}, s{sEPS}, v{Pd+i}")
        p(f"v_cvt_pk_bf16_f32 v{out2}, v{Pd}, v{Pd+1}")
        p(f"v_cvt_pk_bf16_f32 v{out2+1}, v{Pd+2}, v{Pd+3}")

    p.wait_vm("q")
    kblock(QB, C, S, SQ, T)
    kcombine(C)
    phi(C, S, T + 4, T)
    p(f"v_lshlrev_b32 v{T+4}, 16, v{T+4}")
    p(f"v_lshrrev_b32 v{T+5}, 5, v{vL}")
    p(f"v_lshlrev_b32 v{T+5}, 1, v{T+5}")
    p(f"v_and_b32 v{T+6}, 1, v{vL}")
    p(f"v_add_u32 v{T+5}, v{T+5}, v{T+6}")
    p(f"v_lshlrev_b32 v{vZo}, 3, v{T+5}")
    p(f"v_add_u32 v{T+6}, 4, v{vZo}")
    p(f"ds_bpermute_b32 v{vPQ}, v{vZo}, v{T+4}")
    p(f"ds_bpermute_b32 v{vPQ+1}, v{T+6}, v{T+4}")
    p(f"v_lshlrev_b32 v{vL8}, 3, v{vL}")
    p(f"v_lshlrev_b32 v{vM}, 1, v{vZo}")
    p("s_waitcnt lgkmcnt(0)")

    def procK(t, buf, after_wait=None):
        for b in range(2):
            p.wait_vm(f"K{t}{b}")
            if b == 1 and after_wait: after_wait()
            if not nok: kblock(buf + 16 * b, C + 8 * b, S + 4 * b, SQ + 2 * b, T + 8 * b)
    def phiK(t):
        if nophi: return
        for b in range(2):
            kcombine(C + 8 * b)
            phi(C + 8 * b, S + 4 * b, PHI + 4 * t + 2 * b, T + 16)
    def procV(t, buf, after_wait=None, nowait=False):
        if not nowait: p.wait_vm(f"V{t}")
        if after_wait: after_wait()
        if nov: return
        A = vr(PHI + 4 * t, 4)
        p(f"v_mfma_f32_16x16x32_bf16 {vr(Z,4)}, {A}, {vr(ONESB,4)}, {vr(Z,4)}")
        for c in range(4):
            tb = T + 8 * (c & 1)
            for i in range(4):
                r0 = buf + 4 * (2 * i) + c; r1 = buf + 4 * (2 * i + 1) + c
                p(f"v_perm_b32 v{tb+i}, v{r1}, v{r0}, s{sSelLo}")
                p(f"v_perm_b32 v{tb+4+i}, v{r1}, v{r0}, s{sSelHi}")
            e0 = 2 * c
            p(f"v_mfma_f32_16x16x32_bf16 {vr(KV+4*e0,4)}, {A}, {vr(tb,4)}, {vr(KV+4*e0,4)}")
            p(f"v_mfma_f32_16x16x32_bf16 {vr(KV+4*e0+4,4)}, {A}, {vr(tb+4,4)}, {vr(KV+4*e0+4,4)}")
    SE, SA, SB = BUF + 96, BUF + 64, BUF + 32
    def poll(st, tag=None):
        for qq in range(4):
            p(f"s_add_u32 s3, s{sSub}, {qq*16384}")
            p(f"buffer_load_dwordx4 {vr(st+8*qq,4)}, v{vVoff}, {sr(sWs,4)}, s3 offen sc1", tag=tag)
            p(f"buffer_load_dwordx4 {vr(st+8*qq+4,4)}, v{vM}, {sr(sWs,4)}, s3 offen offset:1024 sc1", tag=tag)

    A_, B_, C_ = BUF, BUF + 32, BUF + 64
    if sched == "B":
        procK(0, A_, lambda: loadV(0, C_)); phiK(0)
        procK(1, B_, lambda: loadK(2, A_)); phiK(1)
        procV(0, C_, lambda: loadV(1, B_))
        procK(2, A_, lambda: loadK(3, C_)); phiK(2)
        procV(1, B_, lambda: loadV(2, A_))
        procK(3, C_, lambda: loadV(3, B_)); phiK(3)
    elif sched == "E":
        procK(0, A_, lambda: loadK(1, B_)); phiK(0)
        procK(1, B_, lambda: loadV(0, C_)); phiK(1)
        procV(0, C_, lambda: loadK(2, A_))
        procK(2, A_, lambda: loadV(1, B_)); phiK(2)
        procV(1, B_, lambda: loadK(3, C_))
        procK(3, C_, lambda: loadV(2, A_)); phiK(3)
    else:
        procK(0, A_); loadK(2, A_); phiK(0)
        procK(1, B_); loadV(1, B_); phiK(1)
        procV(0, C_); loadK(3, C_)
        procK(2, A_); loadV(2, A_); phiK(2)
        procV(1, B_); loadV(3, B_)
        procK(3, C_); phiK(3)
    AR = BUF + 64
    def arrive():
        p(f"v_mov_b32 v{AR}, 1")
        p(f"s_lshl_b32 s3, s{sHead}, 2")
        p(f"v_mov_b32 v{AR+1}, s3")
        if not nobarA: p("s_barrier")
        p(f"s_cmp_lg_u32 s{sWave}, 0")
        p("s_cbranch_scc1 L_noarr")
        p("s_mov_b64 exec, 1")
        p(f"buffer_atomic_add v{AR}, v{AR+1}, {sr(sDbg,4)}, 0 offen sc0")
        p.nvm -= 1; p.vm = p.vm[:-1]
        p("s_mov_b64 exec, -1")
        p.label("L_noarr")
    def wait0(n, lab):
        p(f"s_cmp_lg_u32 s{sWave}, 0")
        p(f"s_cbranch_scc1 {lab}a")
        p(f"s_waitcnt vmcnt({n+1})")
        p(f"s_branch {lab}b")
        p.label(f"{lab}a")
        p(f"s_waitcnt vmcnt({n})")
        p.label(f"{lab}b")
    if arrpos == 0:
        procV(2, A_)
        arrive()
    else:
        arrive()
        if sched == "E":
            wait0(0, "L_w2")
            loadV(3, B_)
        else:
            wait0(8, "L_w2")
        procV(2, A_, nowait=True)
    p("s_waitcnt vmcnt(0)")
    p(f"v_mov_b32 v{AR+2}, {LDS_V}")
    p(f"s_cmp_lg_u32 s{sWave}, 0")
    p("s_cbranch_scc1 L_nobc")
    p("s_mov_b64 exec, 1")
    p(f"ds_write_b32 v{AR+2}, v{AR}")
    p("s_mov_b64 exec, -1")
    p.label("L_nobc")
    procV(3, B_, nowait=True)
    p(f"s_lshl_b32 s3, s{sWave}, 12")
    p(f"v_add_u32 v{T}, s3, v{vVoff}")
    p(f"s_lshl_b32 s3, s{sWave}, 5")
    p(f"v_add_u32 v{T+1}, s3, v{vL}")
    p("s_mov_b64 exec, 0x00010001")
    p(f"ds_write_b128 v{T+1}, {vr(Z,4)} offset:{LDS_Z}")
    p("s_mov_b64 exec, -1")
    for e in range(0, 8, 2):
        for i in range(4):
            p(f"v_permlane32_swap_b32 v{KV+4*e+i}, v{KV+4*e+4+i}")
        p(f"ds_write_b128 v{T}, {vr(KV+4*e,4)} offset:{e*512}")
    p(f"s_lshl_b32 s3, s{sWave}, 9")
    p(f"v_add_u32 v{T+2}, s3, v{vL8}")
    p("s_waitcnt lgkmcnt(0)")
    p("s_barrier")
    p(f"s_memrealtime {sr(sTp,2)}")
    if diag:
        p("s_memtime s[90:91]")
    RD = BUF
    p(f"ds_read_b32 v{T+1}, v{AR+2}")
    p(f"s_mov_b32 s{sFail}, {spins}")
    p("s_waitcnt lgkmcnt(0)")
    p(f"v_readfirstlane_b32 s{sLast}, v{T+1}")
    for w in range(NW):
        p(f"ds_read_b64 {vr(RD+4*w,2)}, v{T+2} offset:{w*4096}")
        p(f"ds_read_b64 {vr(RD+4*w+2,2)}, v{vZo} offset:{LDS_Z+w*32}")
        if w == 1:
            p(f"s_and_b32 s{sLast}, s{sLast}, 0xff")
            p(f"s_cmp_lg_u32 s{sLast}, 3")
            p("s_cbranch_scc1 L_red0")
            poll(SE)
            p.label("L_red0")
    PUB = KV
    p("s_waitcnt lgkmcnt(0)")
    p.label("L_red")
    for w in range(1, NW):
        for i in range(4):
            d = PUB + (i if i < 2 else i + 2)
            a0 = RD + i if w == 1 else d
            p(f"v_add_f32 v{d}, v{a0}, v{RD+4*w+i}")
    if badtag: p(f"s_mov_b32 s{sTp+1}, 0")
    p(f"v_mov_b32 v{PUB+2}, s{sTp}"); p(f"v_mov_b32 v{PUB+3}, s{sTp+1}")
    p(f"v_mov_b32 v{PUB+6}, s{sTp}"); p(f"v_mov_b32 v{PUB+7}, s{sTp+1}")
    if diag:
        p("s_memrealtime s[98:99]")
        p("s_mov_b32 s100, 0")
        p("s_mov_b32 s96, 0")
        p(f"s_mov_b32 s{sRound}, 9")
    SUM = T + 8
    def own(st, tagn):
        for qq in range(4):
            p(f"s_cmp_lg_u32 s{sQuart}, {qq}")
            p(f"s_cbranch_scc1 L_own{tagn}_{qq}")
            for i in range(8): p(f"v_mov_b32 v{st+8*qq+i}, v{PUB+i}")
            p.label(f"L_own{tagn}_{qq}")
    def sums(st):
        off = [0, 1, 4, 5]
        for i in range(4): p(f"v_add_f32 v{SUM+i}, v{st+off[i]}, v{st+8+off[i]}")
        for i in range(4): p(f"v_add_f32 v{SUM+i}, v{SUM+i}, v{st+16+off[i]}")
        for i in range(4): p(f"v_add_f32 v{SUM+i}, v{SUM+i}, v{st+24+off[i]}")
    def check(st, tagn, rnd):
        own(st, tagn)
        D = T + 12; E_ = T + 16; BAD = T + 5
        for half in range(2):
            for k2 in range(4):
                g = st + 4 * (4 * half + k2)
                p(f"v_sub_co_u32 v{D+k2}, {sr(CY[k2],2)}, v{g+2}, v{vSLo}")
            for k2 in range(4):
                g = st + 4 * (4 * half + k2)
                p(f"v_subb_co_u32 v{E_+k2}, {sr(CY[k2],2)}, v{g+3}, v{vSHi}, {sr(CY[k2],2)}")
            for k2 in range(4):
                p(f"v_lshrrev_b32 v{D+k2}, 24, v{D+k2}")
            for k2 in range(4):
                if half == 0 and k2 == 0: p(f"v_or_b32 v{BAD}, v{E_}, v{D}")
                else: p(f"v_or3_b32 v{BAD}, v{BAD}, v{E_+k2}, v{D+k2}")
        p(f"v_cmp_ne_u32 vcc, 0, v{BAD}")
        sums(st)
        if diag and rnd is not None: p(f"s_mov_b32 s{sRound}, {rnd}")
        p("s_cbranch_vccz L_final")
    p(f"s_cmp_lg_u32 s{sLast}, 3")
    p("s_cbranch_scc1 L_notlast")
    if diag: p(f"s_mov_b32 s{sRound}, 0")
    p("s_branch L_spin1")
    p.label("L_spin")
    poll(SE)
    p.label("L_spin1")
    p("s_waitcnt vmcnt(0)")
    check(SE, "e", None)
    if diag: p(f"s_add_u32 s{sRound}, s{sRound}, 1")
    p(f"s_sub_u32 s{sFail}, s{sFail}, 1")
    p(f"s_cmp_lg_u32 s{sFail}, 0")
    p("s_cbranch_scc1 L_spin")
    p.label("L_rare")
    p(f"buffer_load_dword v{T+1}, v{AR+1}, {sr(sDbg,4)}, 0 offen sc1")
    p("s_waitcnt vmcnt(0)")
    p(f"v_readfirstlane_b32 s3, v{T+1}")
    p("s_nop 3")
    p("s_bfe_u32 s3, s3, 0x80008")
    p("s_cmp_lg_u32 s3, 3")
    p("s_cbranch_scc0 L_rare2")
    p("s_sleep 8")
    p("s_branch L_rare")
    p.label("L_rare2")
    poll(SE)
    p("s_waitcnt vmcnt(0)")
    own(SE, "t")
    sums(SE)
    p("s_branch L_final")
    p.label("L_notlast")
    if pubmode == 0:
        p(f"buffer_store_dwordx4 {vr(PUB,4)}, v{vVoff}, {sr(sWs,4)}, s{sSlot} offen sc1")
    elif pubmode == 2:
        p(f"buffer_store_dwordx2 {vr(PUB,2)}, v{vL8}, {sr(sWs,4)}, s{sSlot} offen sc1")
    elif pubmode == 3:
        p(f"buffer_store_dwordx4 {vr(PUB,4)}, v{vVoff}, {sr(sWs,4)}, s{sSlot} offen")
    if pubmode != 1:
        p("s_mov_b32 exec_lo, 3")
        p("s_mov_b32 exec_hi, 3")
        p(f"buffer_store_dwordx4 {vr(PUB+4,4)}, v{vM}, {sr(sWs,4)}, s{sSlot} offen offset:1024 sc1")
        p("s_mov_b64 exec, -1")
    p("s_waitcnt vmcnt(0)")
    p("s_barrier")
    p(f"s_cmp_lg_u32 s{sWave}, 0")
    p("s_cbranch_scc1 L_end")
    p("s_mov_b64 exec, 1")
    p(f"v_mov_b32 v{AR}, 0x100")
    p(f"buffer_atomic_add v{AR}, v{AR+1}, {sr(sDbg,4)}, 0 offen")
    p("s_mov_b64 exec, -1")
    p("s_branch L_end")
    p.label("L_final")
    if diag: p("s_memrealtime s[100:101]")
    rnd4(SUM, T + 6)
    NUM, DEN = T + 16, T + 17
    p(f"v_mul_f32 v{NUM}, v{vPQ}, v{SUM}")
    p(f"v_mul_f32 v{DEN}, v{vPQ}, v{SUM+2}")
    p(f"v_fma_f32 v{NUM}, v{vPQ+1}, v{SUM+1}, v{NUM}")
    p(f"v_fma_f32 v{DEN}, v{vPQ+1}, v{SUM+3}, v{DEN}")
    p(f"v_add_f32_dpp v{NUM}, v{NUM}, v{NUM} quad_perm:[1,0,3,2] row_mask:0xf bank_mask:0xf")
    p(f"v_add_f32_dpp v{DEN}, v{DEN}, v{DEN} quad_perm:[1,0,3,2] row_mask:0xf bank_mask:0xf")
    p(f"v_mov_b32 v{T+6}, v{NUM}")
    p(f"v_mov_b32 v{T+7}, v{DEN}")
    p(f"v_permlane32_swap_b32 v{NUM}, v{T+6}")
    p(f"v_permlane32_swap_b32 v{DEN}, v{T+7}")
    p(f"v_add_f32 v{NUM}, v{NUM}, v{T+6}")
    p(f"v_add_f32 v{DEN}, v{DEN}, v{T+7}")
    p(f"v_cvt_pk_bf16_f32 v{T+6}, v{NUM}, v{DEN}")
    p(f"v_lshlrev_b32 v{NUM}, 16, v{T+6}")
    p(f"v_and_b32 v{DEN}, 0xffff0000, v{T+6}")
    p(f"v_add_f32 v{DEN}, s{sEPS}, v{DEN}")
    p(f"v_cvt_pk_bf16_f32 v{T+6}, v{DEN}, v{DEN}")
    p(f"v_lshlrev_b32 v{DEN}, 16, v{T+6}")
    a, b_, c_, d_, e_ = T + 18, T + 19, T + 20, T + 21, T + 22
    p(f"v_div_scale_f32 v{a}, s[80:81], v{DEN}, v{DEN}, v{NUM}")
    p(f"v_div_scale_f32 v{b_}, vcc, v{NUM}, v{DEN}, v{NUM}")
    p(f"v_rcp_f32 v{c_}, v{a}")
    p(f"v_fma_f32 v{d_}, -v{a}, v{c_}, 1.0")
    p(f"v_fma_f32 v{c_}, v{d_}, v{c_}, v{c_}")
    p(f"v_mul_f32 v{d_}, v{b_}, v{c_}")
    p(f"v_fma_f32 v{e_}, -v{a}, v{d_}, v{b_}")
    p(f"v_fma_f32 v{d_}, v{e_}, v{c_}, v{d_}")
    p(f"v_fma_f32 v{a}, -v{a}, v{d_}, v{b_}")
    p(f"v_div_fmas_f32 v{a}, v{a}, v{c_}, v{d_}")
    p(f"v_div_fixup_f32 v{a}, v{a}, v{DEN}, v{NUM}")
    p(f"v_cvt_pk_bf16_f32 v{a}, v{a}, v{a}")
    p(f"s_lshl_b32 s3, s{sWave}, 1")
    p("s_mov_b32 exec_lo, 0x55555555")
    p("s_mov_b32 exec_hi, 0")
    p(f"buffer_store_short v{a}, v{vL8}, {sr(sOut,4)}, s3 offen")
    p("s_mov_b64 exec, -1")
    if diag:
        p("s_waitcnt vmcnt(0)")
        p("s_memrealtime s[96:97]")
    p.label("L_end")
    if diag:
        p("s_cmp_ge_u32 s2, 256")
        p("s_cbranch_scc1 L_end2")
        p(f"s_cmp_ge_u32 s{sWave}, 2")
        p("s_cbranch_scc1 L_end2")
        p("s_memrealtime s[88:89]")
        p("s_lshl_b32 s92, s2, 6")
        p(f"s_lshl_b32 s93, s{sWave}, 5")
        p("s_add_u32 s92, s92, s93")
        p("s_add_u32 s92, s92, 0x1000000")
        p("s_add_u32 s92, s16, s92")
        p("s_addc_u32 s93, s17, 0")
        p("s_mov_b32 s94, 32")
        p("s_mov_b32 s95, 0x20000")
        p("s_mov_b64 exec, 1")
        p("s_waitcnt lgkmcnt(0)")
        p("s_sub_u32 s90, s90, s86")
        p(f"v_mov_b32 v{T}, s{sSt}")
        p(f"v_mov_b32 v{T+1}, s{sTp}")
        p(f"v_mov_b32 v{T+2}, s90")
        p(f"v_mov_b32 v{T+3}, s88")
        p(f"v_mov_b32 v{T+4}, 0")
        p(f"v_mov_b32 v{T+8}, s{sRound}")
        p(f"v_mov_b32 v{T+9}, s98")
        p(f"v_mov_b32 v{T+10}, s100")
        p(f"v_mov_b32 v{T+11}, s96")
        p(f"buffer_store_dwordx4 {vr(T,4)}, v{T+4}, s[92:95], 0 offen")
        p(f"buffer_store_dwordx4 {vr(T+8,4)}, v{T+4}, s[92:95], 0 offen offset:16")
        p.label("L_end2")
    p("s_endpgm")

    lds = LDS_V + 16
    out = HEADER
    out += f"; @launch grid=(256,1,1) block=({NW*64},1,1) lds={lds}\n"
    out += f""".amdgcn_target "amdgcn-amd-amdhsa--gfx950"
.text
.globl {NAME}_kernel
.p2align 8
.type {NAME}_kernel,@function
{NAME}_kernel:
"""
    out += p.text()
    out += f""".section .rodata,"a"
.p2align 6
.amdhsa_kernel {NAME}_kernel
  .amdhsa_next_free_vgpr 256
  .amdhsa_next_free_sgpr 102
  .amdhsa_accum_offset 256
  .amdhsa_group_segment_fixed_size 0
  .amdhsa_kernarg_size 56
  .amdhsa_user_sgpr_count 2
  .amdhsa_user_sgpr_kernarg_segment_ptr 1
  .amdhsa_system_sgpr_workgroup_id_x 1
  .amdhsa_float_denorm_mode_32 3
.end_amdhsa_kernel
"""
    return out, p

if __name__ == "__main__":
    slp = 4
    for a in sys.argv:
        if a.startswith("slp="): slp = int(a[4:])
    txt, p = gen(nt=("" if "plain" in sys.argv else " nt"), diag=("diag" in sys.argv), slp=slp, nofast=("nofast" in sys.argv), noearly=("noearly" in sys.argv), spins=(1 if "spin1" in sys.argv else 64), badtag=("badtag" in sys.argv), arrpos=(1 if "arr1" in sys.argv else 0), sched=("D" if "D" in sys.argv else "E" if "E" in sys.argv else "B"), nok=("nok" in sys.argv), nophi=("nophi" in sys.argv), nov=("nov" in sys.argv), nobarA=("nobarA" in sys.argv), pubmode=max([int(a[3:]) for a in sys.argv if a.startswith("pub")] + [0]))
    open(sys.argv[1], "w").write(txt)
    print("nops inserted:", p.nops_inserted, "lines", len(p.lines))
```
